```python
import torch

def _softmax(x, axis=-1):
    return torch.softmax(x, dim=axis)
def _gelu(x):
    return torch.nn.functional.gelu(x, approximate="tanh")
def _silu(x):
    return torch.nn.functional.silu(x)
def _sigmoid(x):
    return torch.sigmoid(x)
def _layernorm(x, axis=-1, eps=1e-5):
    m = x.mean(dim=axis, keepdim=True)
    v = x.var(dim=axis, keepdim=True, unbiased=False)
    return (x - m) / torch.sqrt(v + eps)
def _scatter_add(tgt, idx, src, axis=0):
    return tgt.clone().index_add_(axis, idx, src)
def _segment_sum(src, seg, n):
    out = torch.zeros((n,) + src.shape[1:], dtype=src.dtype)
    return out.index_add_(0, seg, src)
def _pad(x, pw):
    flat = tuple(v for pair in reversed(pw) for v in pair)
    return torch.nn.functional.pad(x, flat)

kernel_name = 'parallel_sum__grouped_kv_mqa__glu_gated_bilinear__prompt'

def setup_inputs():

    _w = (lambda a: (lambda t: t.to(torch.bfloat16) if t.is_floating_point() else t)(torch.as_tensor(a)))
    def _A_setup():
        B, S, D, H = 1, 2048, 576, 32
        Dh = D // H
        return {
            "x": _w((lambda *s: torch.randn(*s, dtype=torch.bfloat16) * 0.05)(B, S, D)),
            "wq": _w((lambda *s: torch.randn(*s, dtype=torch.bfloat16) * 0.05)(D, H * Dh)),
            "wk": _w((lambda *s: torch.randn(*s, dtype=torch.bfloat16) * 0.05)(D, Dh)),
            "wv": _w((lambda *s: torch.randn(*s, dtype=torch.bfloat16) * 0.05)(D, Dh)),
            "wo": _w((lambda *s: torch.randn(*s, dtype=torch.bfloat16) * 0.05)(H * Dh, D)),
        }
    _A_in = _A_setup()

    def _B_setup():
        B, S, D, F = 1, 2048, 576, 4608
        return {
            "x": _w((lambda *s: torch.randn(*s, dtype=torch.bfloat16) * 0.05)(B, S, D)),
            "w_gate": _w((lambda *s: torch.randn(*s, dtype=torch.bfloat16) * 0.4)(D, F) * (D ** -0.5)),
            "w_up": _w((lambda *s: torch.randn(*s, dtype=torch.bfloat16) * 0.4)(D, F) * (D ** -0.5)),
            "w_down": _w((lambda *s: torch.randn(*s, dtype=torch.bfloat16) * 0.4)(F, D) * (F ** -0.5)),
        }
    _B_in = _B_setup()

    return {
        "A_x": _A_in["x"],
        "A_wq": _A_in["wq"],
        "A_wk": _A_in["wk"],
        "A_wv": _A_in["wv"],
        "A_wo": _A_in["wo"],
        "B_x": _B_in["x"],
        "B_w_gate": _B_in["w_gate"],
        "B_w_up": _B_in["w_up"],
        "B_w_down": _B_in["w_down"],
    }

def reference(A_x, A_wq, A_wk, A_wv, A_wo, B_x, B_w_gate, B_w_up, B_w_down):
    def _A_ref(x, wq, wk, wv, wo):
        B, S, D = x.shape
        H = 32
        Dh = D // H
        q = (lambda x, *d: x.permute(*d))((x @ wq).reshape(B, S, H, Dh), 0, 2, 1, 3)
        k = x @ wk
        v = x @ wv
        scores = torch.einsum("bhqd,bkd->bhqk", q, k) * (Dh ** -0.5)
        p = _softmax(scores, axis=-1)
        o = torch.einsum("bhqk,bkd->bhqd", p, v)
        return (lambda x, *d: x.permute(*d))(o, 0, 2, 1, 3).reshape(B, S, H * Dh) @ wo

    def _B_ref(x, w_gate, w_up, w_down):
        g = torch.einsum("bsd,df->bsf", x, w_gate)
        u = torch.einsum("bsd,df->bsf", x, w_up)
        h = g * u
        return torch.einsum("bsf,fd->bsd", h, w_down)

    x = A_x
    xn = _layernorm(x, axis=-1)
    return x + _A_ref(xn, A_wq, A_wk, A_wv, A_wo) + _B_ref(xn, B_w_gate, B_w_up, B_w_down)
```

```python
import re

REG_RE = re.compile(r'^(-|abs\()?([vas])(\d+|\[(\d+):(\d+)\])\)?$')

def regs_of(tok):
    tok = tok.strip()
    if tok in ('vcc',): return [('s', 106), ('s', 107)]
    if tok == 'vcc_lo': return [('s', 106)]
    if tok == 'vcc_hi': return [('s', 107)]
    if tok == 'exec': return [('s', 126), ('s', 127)]
    if tok == 'exec_lo': return [('s', 126)]
    if tok == 'exec_hi': return [('s', 127)]
    if tok == 'm0': return [('s', 124)]
    m = REG_RE.match(tok)
    if not m: return []
    k = m.group(2)
    if m.group(4) is not None:
        return [(k, i) for i in range(int(m.group(4)), int(m.group(5)) + 1)]
    return [(k, int(m.group(3)))]

TRANS = ('v_exp_f32', 'v_log_f32', 'v_rcp_f32', 'v_rsq_f32', 'v_sqrt_f32', 'v_sin_f32', 'v_cos_f32')
PASSES = {'v_mfma_f32_16x16x32_bf16': 4, 'v_mfma_f32_32x32x16_bf16': 8, 'v_smfmac_f32_32x32x32_bf16': 8,
          'v_mfma_f32_32x32x4_2b_bf16': 16, 'v_mfma_f32_16x16x4_4b_bf16': 8}

class Ins:
    __slots__ = ('text', 'op', 'kind', 'dst', 'src', 'srcC', 'srcAB', 'passes', 'ws', 'dpp', 'lds_dma', 'wide_store', 'sdata')
    def __init__(self, text):
        self.text = text
        t = text.split(';')[0].strip()
        parts = t.split(None, 1)
        op = parts[0]
        self.op = op
        rest = parts[1] if len(parts) > 1 else ''
        ops = [x.strip() for x in rest.split(',')] if rest else []
        mods = ''
        if ops:
            sp = ops[-1].split(None, 1)
            ops[-1] = sp[0]
            mods = sp[1] if len(sp) > 1 else ''
        base = re.sub(r'_(e32|e64|dpp|sdwa)$', '', op)
        self.dst = []; self.src = []; self.srcC = []; self.srcAB = []; self.passes = 0; self.ws = 1
        self.dpp = ('row_' in mods or 'quad_perm' in mods or op.endswith('_dpp')); self.lds_dma = False
        self.wide_store = False; self.sdata = []
        R = [regs_of(o) for o in ops]
        flat = lambda L: [r for x in L for r in x]
        if base in PASSES:
            self.kind = 'mfma'; self.passes = PASSES[base]
            self.dst = R[0]
            if 'smfmac' in base:
                self.srcAB = R[1] + R[2] + R[3]; self.srcC = R[0]
            else:
                self.srcAB = R[1] + R[2]; self.srcC = R[3]
            self.src = self.srcAB + self.srcC
        elif base.startswith('v_'):
            self.kind = 'trans' if base in TRANS else 'valu'
            if base.startswith('v_cmp'):
                self.dst = R[0]; self.src = flat(R[1:])
            elif base in ('v_permlane32_swap_b32', 'v_permlane16_swap_b32', 'v_swap_b32'):
                self.dst = R[0] + R[1]; self.src = R[0] + R[1]
            elif base in ('v_add_co_u32', 'v_sub_co_u32'):
                self.dst = R[0] + R[1]; self.src = flat(R[2:])
            elif base in ('v_addc_co_u32',):
                self.dst = R[0] + R[1]; self.src = flat(R[2:])
            elif base in ('v_fmac_f32', 'v_dot2c_f32_bf16', 'v_writelane_b32') or self.dpp or 'UNUSED_PRESERVE' in mods:
                self.dst = R[0]; self.src = flat(R)
            elif base == 'v_nop':
                pass
            else:
                self.dst = R[0]; self.src = flat(R[1:])
                if base == 'v_cndmask_b32' and len(ops) == 3: self.src += regs_of('vcc')
        elif base.startswith('ds_'):
            self.kind = 'ds'
            if base.startswith('ds_read') or base.startswith('ds_bpermute') or base.startswith('ds_swizzle'):
                self.dst = R[0]; self.src = flat(R[1:])
            else:
                self.src = flat(R)
        elif base.startswith('buffer_') or base.startswith('global_'):
            self.kind = 'vmem'
            allm = mods.split()
            if base in ('buffer_inv', 'buffer_wbl2'):
                pass
            elif 'lds' in allm or '_lds_' in base:
                self.lds_dma = True; self.src = flat(R) + regs_of('m0')
            elif 'load' in base:
                self.dst = R[0]; self.src = flat(R[1:])
            elif 'atomic' in base:
                self.src = flat(R)
                if 'sc0' in allm: self.dst = R[0]
            else:
                self.src = flat(R); self.sdata = R[0] if base.startswith('buffer_') else R[1]
                self.wide_store = base.endswith('x3') or base.endswith('x4')
        elif base.startswith('s_load') or base in ('s_memtime', 's_memrealtime'):
            self.kind = 'smem'; self.dst = R[0]; self.src = flat(R[1:])
        elif base == 's_nop':
            self.kind = 'nop'; self.ws = int(ops[0], 0) + 1
        elif base in ('s_waitcnt', 's_barrier', 's_endpgm', 's_branch', 's_setprio', 's_sleep') or base.startswith('s_cbranch'):
            self.kind = 'ctl'
        elif base.startswith('s_cmp') or base.startswith('s_bitcmp'):
            self.kind = 'salu'; self.src = flat(R)
        elif base.startswith('s_'):
            self.kind = 'salu'; self.dst = R[0]; self.src = flat(R[1:])
            if 'saveexec' in base: self.dst = self.dst + regs_of('exec')
        else:
            raise ValueError('unknown instruction ' + text)

OVL_C = {2: 4, 4: 6, 8: 10, 16: 18}
D_USE = {2: 5, 4: 8, 8: 12, 16: 20}
C_WAR = {2: 1, 4: 3, 8: 7, 16: 15}

def need_states(p, c):
    n = 0
    ps, cs = set(p.dst), set(c.src)
    cd = set(c.dst)
    pv = p.kind in ('valu', 'trans'); cv = c.kind in ('valu', 'trans')
    if pv:
        hit = ps & cs
        vec = any(r[0] in 'va' for r in hit); sc = any(r[0] == 's' for r in hit)
        if c.kind == 'mfma' and vec: n = max(n, 2)
        if vec and cv:
            if p.kind == 'trans' and c.kind != 'trans': n = max(n, 1)
            if c.op.startswith('v_permlane') or c.dpp: n = max(n, 2)
            if c.op.startswith('v_readlane') or c.op.startswith('v_readfirstlane'): n = max(n, 1)
            if 'sdwa' in p.op: n = max(n, 1)
        if p.op.startswith('v_dot2') and (hit or (ps & cd)) and not (c.op == p.op): n = max(n, 3)
        if p.op.startswith('v_dot2') and c.op == p.op and (ps & (set(c.src) - set(c.dst))): n = max(n, 3)
        if sc:
            if cv: n = max(n, 4 if ('lane' in c.op) else 2)
            if c.kind == 'vmem': n = max(n, 5)
            if c.kind in ('salu', 'ctl'): n = max(n, 1)
        if any(r in (('s', 126), ('s', 127)) for r in ps):
            if c.kind == 'mfma': n = max(n, 4)
            if cv: n = max(n, 5)
        if any(r in (('s', 106), ('s', 107)) for r in ps) and c.op.startswith('s_cbranch_vcc'): n = max(n, 5)
    if p.kind == 'mfma':
        P = p.passes
        if c.kind == 'mfma':
            if ps & set(c.srcAB): n = max(n, D_USE[P])
            if ps & set(c.srcC):
                if not (p.dst == c.srcC and P == c.passes and (('smfmac' in p.op) == ('smfmac' in c.op))): n = max(n, OVL_C[P])
            elif ps & cd and P > c.passes: n = max(n, OVL_C[P])
        else:
            if (ps & cs) or (ps & cd): n = max(n, D_USE[P])
            if cv and (set(p.srcC) & cd): n = max(n, C_WAR[P])
    if p.kind == 'salu' and ('s', 124) in ps and c.lds_dma: n = max(n, 1)
    if p.kind == 'vmem' and p.wide_store and (set(p.sdata) & cd): n = max(n, 2)
    return n

class Em:
    def __init__(self):
        self.out = []
        self.hist = []
        self.lg = []
        self.vm = []
        self.smem_out = False
        self.nid = 0
        self.tags = {}
        self.t = 0; self.port = 0; self.pipe = 0
        self.nnop = 0; self.nwait = 0; self.ninstr = 0
        self.marks = []
    def raw(self, text): self.out.append(text)
    def comment(self, text): self.out.append('; ' + text)
    def mark(self, name): self.marks.append((name, self.t, self.ninstr, self.nnop, self.nwait))
    def _time(self, ins):
        k = ins.kind
        t = self.t
        if k == 'mfma':
            t = max(t, self.port, self.pipe)
            self.pipe = t + 4 * ins.passes
            self.port = t + (12 if 'smfmac' in ins.op else 8)
            self.t = t + 4
        elif k == 'trans':
            t = max(t, self.port); self.t = t + 8; self.port = self.t
        elif k == 'valu':
            t = max(t, self.port); self.t = t + 4; self.port = self.t
        else:
            self.t = t + 4 * ins.ws
    def _emit(self, ins):
        self.out.append('  ' + ins.text)
        self.hist.append(ins)
        if len(self.hist) > 24: self.hist.pop(0)
        self._time(ins); self.ninstr += 1
    def _waitcnt(self, vm=None, lg=None):
        parts = []
        if vm is not None:
            vm = min(vm, 63); parts.append(f'vmcnt({vm})'); self.vm = self.vm[len(self.vm) - vm:] if vm else []
        if lg is not None:
            lg = min(lg, 15); parts.append(f'lgkmcnt({lg})'); self.lg = self.lg[len(self.lg) - lg:] if lg else []
            if lg == 0: self.smem_out = False
        self._emit(Ins('s_waitcnt ' + ' '.join(parts))); self.nwait += 1
    def _pending(self, q, regs):
        idx = -1
        for i, (_, d) in enumerate(q):
            if d & regs: idx = i
        return None if idx < 0 else len(q) - 1 - idx
    def I(self, text, tag=None):
        ins = Ins(text)
        touched = set(ins.src) | set(ins.dst)
        vm = self._pending(self.vm, touched); lg = self._pending(self.lg, touched)
        if lg is not None and self.smem_out: lg = 0
        if vm is not None or lg is not None: self._waitcnt(vm, lg)
        dist = 0; need = 0
        for p in reversed(self.hist):
            need = max(need, need_states(p, ins) - dist)
            dist += p.ws
            if dist >= 20: break
        while need > 0:
            k = min(need, 16); self._emit(Ins(f's_nop {k-1}')); self.nnop += k; need -= k
        self._emit(ins)
        self.nid += 1
        if ins.kind == 'vmem': self.vm.append((self.nid, set(ins.dst)))
        elif ins.kind == 'ds': self.lg.append((self.nid, set(ins.dst)))
        elif ins.kind == 'smem':
            self.lg.append((self.nid, set(ins.dst))); self.smem_out = True
        if tag is not None: self.tags[tag] = self.nid
        return self.nid
    def L(self, text):
        for ln in text.strip().split('\n'):
            ln = ln.strip()
            if ln and not ln.startswith(';'): self.I(ln)
    def wait_id(self, vm_id=None, lg_id=None):
        vm = lg = None
        if vm_id is not None:
            ids = [i for i, _ in self.vm]
            k = [j for j, i in enumerate(ids) if i <= vm_id]
            if k: vm = len(ids) - 1 - k[-1]
        if lg_id is not None:
            ids = [i for i, _ in self.lg]
            k = [j for j, i in enumerate(ids) if i <= lg_id]
            if k: lg = len(ids) - 1 - k[-1]
            if lg is not None and self.smem_out: lg = 0
        if vm is not None or lg is not None: self._waitcnt(vm, lg)
    def wait_all(self, vm=True, lg=True):
        self._waitcnt(0 if vm else None, 0 if lg else None)
    def fence(self):
        self._waitcnt(0, 0)
        self._emit(Ins('s_nop 15')); self._emit(Ins('s_nop 3'))
        self.hist = []
    def label(self, name): self.out.append(name + ':')
    def text(self): return '\n'.join(self.out)
```

```python
import sys, argparse
from asmlib import Em

KNAME = "parallel_sum__grouped_kv_mqa__glu_gated_bilinear__prompt_kernel"

WS_STAT = 0x0
WS_CS   = 0x10000
WS_KV   = 0x100000
WS_O    = 0x140000
WS_PART = 0x400000
WS_DUMP = 0x3000000
OOB = 0x40000000
C_A, C_B, C_C = 0, 64, 128
SLOT = 20480
NS = 4
L_X = 81920
L_H = 90112
L_QS = 90112
L_WO = 81920
RED_RS = 656
LDS_BYTES = 163840
CQ = 1.4426950408889634 / (18 ** 0.5)
SPIN = 0x40000

def f2u(x):
    import struct
    return struct.unpack('<I', struct.pack('<f', x))[0]

sX, sW, sQ, sWD, sWO, sWS, sOUT, sDBG = 8, 12, 16, 20, 24, 28, 32, 36
def srd(b): return f"s[{b}:{b+3}]"
s_rb, s_fc, s_wv, s_tg, s_fh = 64, 65, 66, 67, 68
s_j = 69
s_kW, s_kQ, s_kXa, s_kXb = 70, 71, 72, 73
s_mW, s_mQ, s_mX = 74, 75, 76
s_qstr = 77
s_t0, s_t1, s_t2, s_t3 = 78, 79, 80, 81
s_kc = 82
s_it = 91
s_ps = 92
s_pb = 93
s_mD = 94
s_cnt = 95
s_mask = 96
s_mask2 = 98
s_xrow = 100
s_kv = 101
s_ab = 40
s_wo = 41
s_mWO = 42
s_ob = 43
s_its = 44
s_tq, s_cq = 45, 46
s_td = 47
s_ex = 48
s_k0, s_k1, s_k2, s_k3 = 50, 51, 52, 53
s_mk = 54
s_mf = 56
s_qs = 58

vLane = 1
vDW, vDQ, vDX = 2, 3, 4
vRA0, vRA1 = 5, 6
vRQ0, vRQ1a, vRQ1b = 7, 8, 9
vRX = 10
vRC0, vRC1 = 11, 12
vRCa, vRCb = 13, 15
vIDX = 14
vT = 16
vQ2 = 44
vQ0 = 36
vSEL2 = 66
vRD = 16
vR = 24
vHT = 28
vWD = 110
vS = 48; vO = 112; vF = 176; vX = 144
vK1, vK2, vVv, vWm, vWr, vWt, vAb = 5, 7, 9, 11, 12, 13, 15
vR32 = 16
vG = 112
def G(j, b): return vG + 16 * j + 4 * b
aU = 0
aQ = 144
aA = 176
aB = 196
aSEL = 228
aCS = 244
def vr(a, n=4): return f"v[{a}:{a+n-1}]"
def ar(a, n=4): return f"a[{a}:{a+n-1}]"

class Gen:
    def __init__(self, stage=99, stamps=False):
        self.em = Em(); self.stage = stage; self.stamps = stamps
        self.q = []; self.pq = []
        self.ool = []
        self.nst = 0
        self.grp = {}
    def I(self, t, tag=None): return self.em.I(t, tag)
    def L(self, t): self.em.L(t)
    def group(self, lines):
        out = []; i = 0
        while i < len(lines):
            x = lines[i]
            if isinstance(x, str) and (x.startswith('s_cmp') or x.startswith('s_bitcmp')):
                j = i + 1; end = i
                while j < len(lines) and isinstance(lines[j], str):
                    y = lines[j]
                    if y.startswith('s_cselect'): end = j
                    elif y.startswith('s_') and not y.startswith('s_mov'): break
                    j += 1
                blk = lines[i:end + 1]
                out.append(lambda blk=blk: [self.I(y) for y in blk])
                i = end + 1
            else:
                out.append(x); i += 1
        return out
    def Q(self, t, pri=False):
        ls = [ln.strip() for ln in t.strip().split('\n')]
        ls = [ln for ln in ls if ln and not ln.startswith(';')]
        (self.pq if pri else self.q).extend(self.group(ls))
    def Qf(self, fn, pri=False): (self.pq if pri else self.q).append(fn)
    def fill(self, n):
        while n > 0 and (self.pq or self.q):
            x = self.pq.pop(0) if self.pq else self.q.pop(0)
            if callable(x): x()
            else: self.I(x)
            n -= 1
    def flush(self): self.fill(1 << 30)
    def stamp(self):
        if not self.stamps: return
        k = self.nst; self.nst += 1
        self.I("s_memrealtime s[4:5]")
        self.em.wait_all(vm=False)
        self.I(f"v_writelane_b32 v47, s4, {k}")
    def spin(self, name, load, check):
        em = self.em
        check()
        self.I(f"s_cbranch_scc0 L_{name}_spin")
        em.label(f"L_{name}_ok")
        def ool():
            em.label(f"L_{name}_spin")
            em.fence()
            self.I(f"s_mov_b32 s{s_cnt}, 0")
            em.label(f"L_{name}_again")
            load()
            em.wait_all()
            check()
            self.I(f"s_cbranch_scc1 L_{name}_done")
            self.I(f"s_add_u32 s{s_cnt}, s{s_cnt}, 1")
            self.I(f"s_cmp_lt_u32 s{s_cnt}, {SPIN}")
            self.I(f"s_cbranch_scc1 L_{name}_again")
            em.label(f"L_{name}_done")
            em.fence()
            self.I(f"s_branch L_{name}_ok")
        self.ool.append(ool)
    def poll_counter(self, name, vtmp, soff, target):
        load = lambda: self.I(f"buffer_load_dword v{vtmp}, off, {srd(sDBG)}, {soff} sc1")
        def check():
            self.I(f"v_readfirstlane_b32 s{s_t3}, v{vtmp}")
            self.I(f"s_cmp_ge_u32 s{s_t3}, {target}")
        return load, (lambda: self.spin(name, load, check))

    def prologue(self):
        I, L = self.I, self.L
        L(f"""
        s_cmp_ge_u32 s2, 256
        s_cbranch_scc1 L_end
        s_load_dwordx16 s[40:55], s[0:1], 0
        s_load_dwordx8 s[56:63], s[0:1], 64
        v_lshrrev_b32 v16, 6, v0
        v_and_b32 v{vLane}, 63, v0
        v_readfirstlane_b32 s{s_wv}, v16
        s_lshr_b32 s{s_rb}, s2, 4
        s_and_b32 s{s_fc}, s2, 7
        s_lshl_b32 s{s_fc}, s{s_fc}, 1
        s_bfe_u32 s{s_t0}, s2, 0x10003
        s_add_u32 s{s_fc}, s{s_fc}, s{s_t0}
        s_lshr_b32 s{s_tg}, s{s_wv}, 1
        s_and_b32 s{s_fh}, s{s_wv}, 1
        s_lshr_b32 s{s_t0}, s{s_rb}, 3
        s_add_u32 s{s_j}, s{s_rb}, s{s_t0}
        """)
        if self.stamps: I("v_mov_b32 v47, 0")
        L(f"""
        s_lshl_b32 s{s_t0}, s{s_rb}, 7
        s_mul_i32 s{s_xrow}, s{s_t0}, 1152
        s_lshl_b32 s{s_t1}, s{s_fc}, 3
        s_lshl_b32 s{s_t2}, s{s_wv}, 1
        s_add_u32 s{s_t1}, s{s_t1}, s{s_t2}
        s_add_u32 s{s_t0}, s{s_t0}, s{s_t1}
        v_lshrrev_b32 v17, 5, v{vLane}
        v_add_u32 v46, s{s_t0}, v17
        v_mul_u32_u24 v18, 1152, v46
        v_and_b32 v19, 31, v{vLane}
        v_lshl_add_u32 v20, v19, 4, v18
        v_lshl_add_u32 v21, v19, 2, v18
        """)
        L(f"""
        v_bfe_u32 v22, v{vLane}, 4, 1
        v_bfe_u32 v23, v{vLane}, 2, 2
        v_lshl_add_u32 v23, v17, 2, v23
        v_lshl_add_u32 v23, v22, 3, v23
        s_lshl_b32 s{s_t1}, s{s_fh}, 4
        v_add_u32 v23, s{s_t1}, v23
        v_mul_u32_u24 v23, 9216, v23
        v_and_b32 v24, 3, v{vLane}
        v_lshlrev_b32 v25, 1, v22
        v_xor_b32 v25, v24, v25
        v_lshl_add_u32 v23, v25, 4, v23
        s_mul_i32 s{s_t1}, s{s_fc}, 576
        v_add_u32 v{vDW}, s{s_t1}, v23
        """)
        L(f"""
        v_lshrrev_b32 v26, 2, v{vLane}
        s_lshl_b32 s{s_t1}, s{s_wv}, 4
        v_add_u32 v26, s{s_t1}, v26
        v_mul_u32_u24 v26, 1152, v26
        v_lshrrev_b32 v27, 4, v{vLane}
        v_sub_u32 v27, 0, v27
        v_and_b32 v27, 3, v27
        v_xor_b32 v27, v24, v27
        v_lshl_add_u32 v{vDX}, v27, 4, v26
        """)
        L(f"""
        s_lshl_b32 s{s_t1}, s{s_wv}, 6
        v_add_u32 v28, s{s_t1}, v{vLane}
        v_mul_u32_u24 v29, 43691, v28
        v_lshrrev_b32 v29, 18, v29
        v_mul_u32_u24 v30, 6, v29
        v_sub_u32 v30, v28, v30
        v_cmp_le_u32 vcc, 3, v30
        v_cndmask_b32 v31, 0, 1, vcc
        v_mul_u32_u24 v32, 3, v31
        v_sub_u32 v32, v30, v32
        v_lshlrev_b32 v32, 4, v32
        v_min_u32 v32, 20, v32
        v_mul_u32_u24 v29, 1152, v29
        v_mul_u32_u24 v31, 36, v31
        v_add3_u32 v29, v29, v31, v32
        s_mul_i32 s{s_t1}, s{s_fc}, 72
        v_add_u32 v29, s{s_t1}, v29
        v_lshrrev_b32 v30, 1, v{vLane}
        v_mul_u32_u24 v30, 36, v30
        v_and_b32 v31, 1, v{vLane}
        s_bitcmp1_b32 s{s_fc}, 0
        s_cselect_b32 s{s_t1}, 20, 0
        s_cselect_b32 s{s_t2}, {OOB}, 16
        v_mul_lo_u32 v31, v31, s{s_t2}
        v_add3_u32 v30, v30, v31, s{s_t1}
        s_movk_i32 s{s_qstr}, {32*36}
        s_cmp_eq_u32 s{s_wv}, 3
        s_cselect_b64 s[{s_mask}:{s_mask+1}], -1, 0
        s_cselect_b32 s{s_qstr}, s{s_qstr}, {32*1152}
        v_cndmask_b32 v{vDQ}, v29, v30, s[{s_mask}:{s_mask+1}]
        """)
        L(f"""
        s_lshl_b32 s{s_mW}, s{s_tg}, 11
        s_lshl_b32 s{s_t1}, s{s_fh}, 10
        s_add_u32 s{s_mW}, s{s_mW}, s{s_t1}
        s_lshl_b32 s{s_mQ}, s{s_wv}, 10
        s_add_u32 s{s_mX}, s{s_mQ}, {L_X}
        s_add_u32 s{s_mQ}, s{s_mQ}, 16384
        """)
        self.em.wait_all(vm=False)
        L(f"""
        s_mov_b32 s{sX}, s40
        s_mov_b32 s{sX+1}, s41
        s_mov_b32 s{sX+2}, {2048*1152}
        s_mov_b32 s{sX+3}, 0x20000
        buffer_load_dwordx4 v[16:19], v20, {srd(sX)}, 0 offen
        buffer_load_dwordx4 v[24:27], v20, {srd(sX)}, 0 offen offset:512
        buffer_load_dword v28, v21, {srd(sX)}, 0 offen offset:1024
        s_cmp_eq_u32 s{s_tg}, 0
        s_cselect_b32 s{sW}, s52, s54
        s_cselect_b32 s{sW+1}, s53, s55
        s_mov_b32 s{sW+2}, {576*9216}
        s_mov_b32 s{sW+3}, 0x20000
        s_cmp_lt_u32 s{s_fc}, 2
        s_cselect_b32 s{sQ}, s44, s46
        s_cselect_b32 s{sQ+1}, s45, s47
        s_cmp_lt_u32 s{s_fc}, 4
        s_cselect_b32 s{sQ+2}, {576*36}, 0
        s_cmp_eq_u32 s{s_wv}, 3
        s_cselect_b32 s{sQ}, s{sQ}, s42
        s_cselect_b32 s{sQ+1}, s{sQ+1}, s43
        s_cselect_b32 s{sQ+2}, s{sQ+2}, {576*1152}
        s_mov_b32 s{sQ+3}, 0x20000
        """)
        self.set_k()
        I(f"s_add_u32 m0, s{s_mX}, {self.xslab(0)}")
        I(f"buffer_load_dwordx4 v{vDX}, {srd(sX)}, s{s_kXa} offen lds")
        for d in range(3):
            for t in self.dma_group(d): t() if callable(t) else I(t)
        L(f"""
        s_mov_b32 s{sWD}, s56
        s_mov_b32 s{sWD+1}, s57
        s_mov_b32 s{sWD+2}, {4608*1152}
        s_mov_b32 s{sWD+3}, 0x20000
        s_mov_b32 s{sWO}, s48
        s_mov_b32 s{sWO+1}, s49
        s_mov_b32 s{sWO+2}, {576*1152}
        s_mov_b32 s{sWO+3}, 0x20000
        s_mov_b32 s{sWS}, s62
        s_mov_b32 s{sWS+1}, s63
        s_mov_b32 s{sWS+2}, 0x10000000
        s_mov_b32 s{sWS+3}, 0x20000
        s_mov_b32 s{sOUT}, s58
        s_mov_b32 s{sOUT+1}, s59
        s_mov_b32 s{sOUT+2}, {2048*1152}
        s_mov_b32 s{sOUT+3}, 0x20000
        s_mov_b32 s{sDBG}, s60
        s_mov_b32 s{sDBG+1}, s61
        s_mov_b32 s{sDBG+2}, 256
        s_mov_b32 s{sDBG+3}, 0x20000
        """)
        self.stamp()
        L(f"""
        v_lshrrev_b32 v30, 4, v{vLane}
        v_bfe_u32 v31, v{vLane}, 2, 2
        v_and_b32 v32, 3, v{vLane}
        v_and_b32 v33, 1, v30
        v_lshrrev_b32 v34, 1, v30
        v_lshl_add_u32 v35, v33, 2, v31
        v_lshlrev_b32 v35, 6, v35
        v_lshl_add_u32 v35, v34, 10, v35
        v_xor_b32 v33, s{s_fh}, v33
        v_lshl_add_u32 v35, v33, 5, v35
        v_lshl_add_u32 v{vRA0}, v32, 3, v35
        v_add_u32 v{vRA1}, {2*SLOT}, v{vRA0}
        s_lshl_b32 s{s_t1}, s{s_tg}, 11
        v_add_u32 v{vRC0}, s{s_t1}, v{vRA0}
        v_add_u32 v{vRC1}, s{s_t1}, v{vRA1}
        v_lshl_add_u32 v33, v30, 3, v31
        v_mul_u32_u24 v34, 96, v33
        s_mul_i32 s{s_t1}, s{s_fh}, 48
        s_add_u32 s{s_t1}, s{s_t1}, {SLOT + 16384}
        v_add_u32 v34, s{s_t1}, v34
        v_lshl_add_u32 v{vRQ0}, v32, 3, v34
        v_add_u32 v34, 40, v34
        v_lshlrev_b32 v35, 5, v33
        s_lshl_b32 s{s_t1}, s{s_fh}, 4
        s_add_u32 s{s_t1}, s{s_t1}, {SLOT + 16384 + 3072 - 8}
        v_add_u32 v35, s{s_t1}, v35
        v_min_u32 v36, 2, v32
        v_lshl_add_u32 v35, v36, 3, v35
        v_cmp_eq_u32 vcc, 0, v32
        v_cndmask_b32 v{vRQ1a}, v35, v34, vcc
        v_add_u32 v34, 384, v34
        v_add_u32 v35, 128, v35
        v_cndmask_b32 v{vRQ1b}, v35, v34, vcc
        s_cmp_eq_u32 s{s_tg}, 0
        s_cselect_b64 s[{s_mask}:{s_mask+1}], -1, 0
        v_add_u32 v34, 384, v{vRQ0}
        v_cndmask_b32 v{vRCa}, v{vRQ1a}, v{vRQ0}, s[{s_mask}:{s_mask+1}]
        v_cndmask_b32 v{vRCb}, v{vRQ1b}, v34, s[{s_mask}:{s_mask+1}]
        v_and_b32 v33, 15, v{vLane}
        v_sub_u32 v34, 0, v31
        v_and_b32 v34, 3, v34
        v_xor_b32 v34, v30, v34
        v_lshlrev_b32 v33, 6, v33
        v_lshl_add_u32 v33, v34, 4, v33
        s_lshl_b32 s{s_t1}, s{s_tg}, 12
        s_add_u32 s{s_t1}, s{s_t1}, {L_X}
        v_add_u32 v{vRX}, s{s_t1}, v33
        v_mov_b32 v{vIDX}, 0xdddd
        """)
        L(f"""
        s_and_b32 s{s_t1}, s{s_rb}, 7
        s_cmp_eq_u32 s{s_t1}, 7
        s_cselect_b32 s{s_t1}, -1, 0
        """)
        for i0 in range(4):
            I(f"v_cmp_eq_u32 vcc, {i0}, v32")
            I(f"v_mov_b32 v33, 0x3f803f80")
            I(f"v_cndmask_b32 v33, 0, v33, vcc")
            for k in range(4): I(f"v_accvgpr_write_b32 a{aSEL+4*i0+k}, v33")
            for k in range(4): I(f"v_and_b32 v{vSEL2+4*i0+k}, s{s_t1}, v33")
        L(f"""
        s_lshl_b32 s{s_t0}, s{s_rb}, 2
        s_lshl_b32 s{s_t1}, s{s_tg}, 1
        s_add_u32 s{s_t0}, s{s_t0}, s{s_t1}
        s_mul_i32 s{s_ob}, s{s_t0}, 36864
        s_add_u32 s{s_ob}, s{s_ob}, {WS_O}
        v_mov_b32 v40, -1
        v_mov_b32 v41, -1
        v_mov_b32 v42, -1
        v_mov_b32 v43, -1
        """)
        self.o_addr(38, 39)
        for t in range(2):
            I(f"s_add_u32 s{s_t0}, s{s_ob}, {t*36864}")
            I(f"buffer_store_dwordx4 v[40:43], v38, {srd(sWS)}, s{s_t0} offen sc1")
            I(f"buffer_store_dword v40, v39, {srd(sWS)}, s{s_t0} offen sc1")
        src = [16, 17, 18, 19, 24, 25, 26, 27, 28]
        lo = [48 + 2 * i for i in range(9)]
        for i, r in enumerate(src):
            I(f"v_lshlrev_b32 v{lo[i]}, 16, v{r}")
            I(f"v_and_b32 v{lo[i]+1}, 0xffff0000, v{r}")
        I("v_add_f32 v30, v48, v49")
        I("v_add_f32 v31, v50, v51")
        for i in range(52, 66, 2):
            I(f"v_add_f32 v30, v30, v{i}")
            I(f"v_add_f32 v31, v31, v{i+1}")
        I("v_add_f32 v30, v30, v31")
        self.red32(30, 31)
        I(f"v_mul_f32 v30, {hex(f2u(1.0/576))}, v30")
        for i in range(48, 66): I(f"v_sub_f32 v{i}, v{i}, v30")
        I("v_mul_f32 v32, v48, v48")
        I("v_mul_f32 v33, v49, v49")
        for i in range(50, 66, 2):
            I(f"v_fmac_f32 v32, v{i}, v{i}")
            I(f"v_fmac_f32 v33, v{i+1}, v{i+1}")
        I("v_add_f32 v32, v32, v33")
        self.red32(32, 33)
        L(f"""
        v_mul_f32 v32, {hex(f2u(1.0/576))}, v32
        v_cvt_pk_bf16_f32 v33, v30, v32
        v_lshlrev_b32 v30, 16, v33
        v_and_b32 v32, 0xffff0000, v33
        v_add_f32 v32, {hex(f2u(1e-5))}, v32
        v_cvt_pk_bf16_f32 v32, v32, v32
        v_lshlrev_b32 v32, 16, v32
        v_sqrt_f32 v32, v32
        v_cvt_pk_bf16_f32 v32, v32, v32
        v_lshlrev_b32 v32, 16, v32
        v_rcp_f32 v31, v32
        v_lshlrev_b32 v33, 3, v46
        v_and_b32 v34, 31, v{vLane}
        v_cmp_eq_u32 vcc, 0, v34
        v_mov_b32 v34, {OOB}
        v_cndmask_b32 v33, v34, v33, vcc
        buffer_store_dwordx2 v[30:31], v33, {srd(sWS)}, 0 offen sc1
        """)
    def red32(self, v, t):
        for s in (8, 4, 2, 1):
            self.I(f"v_add_f32_dpp v{v}, v{v}, v{v} row_ror:{s} row_mask:0xf bank_mask:0xf")
        self.I(f"v_mov_b32 v{t}, v{v}")
        self.I(f"v_permlane16_swap_b32 v{v}, v{t}")
        self.I(f"v_add_f32 v{v}, v{v}, v{t}")
    def o_addr(self, vm, vrm, emit=None):
        e = emit or self.L
        e(f"""
        s_lshl_b32 s{s_t2}, s{s_fc}, 1
        s_add_u32 s{s_t2}, s{s_t2}, s{s_fh}
        s_lshl_b32 s{s_t3}, s{s_t2}, 10
        v_lshlrev_b32 v{vm}, 4, v{vLane}
        v_cmp_gt_u32 vcc, 32, v{vLane}
        v_mov_b32 v{vrm}, {OOB}
        v_cndmask_b32 v{vrm}, v{vrm}, v{vm}, vcc
        v_add_u32 v{vm}, s{s_t3}, v{vm}
        s_lshr_b32 s{s_t3}, s{s_t2}, 2
        s_lshl_b32 s{s_t3}, s{s_t3}, 9
        s_and_b32 s{s_t2}, s{s_t2}, 3
        s_lshl_b32 s{s_t2}, s{s_t2}, 2
        s_add_u32 s{s_t3}, s{s_t3}, s{s_t2}
        s_add_u32 s{s_t3}, s{s_t3}, 32768
        v_add_u32 v{vrm}, s{s_t3}, v{vrm}
        """)
    def xslab(self, i): return ((i + 1) % 2) * 8192
    def set_k(self):
        self.L(f"""
        s_mul_i32 s{s_kW}, s{s_j}, {32*9216}
        s_mul_i32 s{s_kQ}, s{s_j}, s{s_qstr}
        s_lshl_b32 s{s_kXa}, s{s_j}, 6
        s_add_u32 s{s_kXa}, s{s_kXa}, s{s_xrow}
        s_add_u32 s{s_kXb}, s{s_kXa}, {64*1152}
        """)
    def dma_group(self, d):
        o = []
        sl = (d % NS) * SLOT
        def last(text, d=d):
            def f(): self.grp[d] = self.I(text)
            return f
        if d < 36:
            i, half = divmod(d, 2)
            if half == 0:
                for P in range(5):
                    o.append(f"s_add_u32 m0, s{s_mW}, {sl + P*4096 - P*64}")
                    o.append(f"buffer_load_dwordx4 v{vDW}, {srd(sW)}, s{s_kW} offen offset:{P*64} lds")
                o.append(f"s_add_u32 m0, s{s_mX}, {self.xslab(i) + 4096}")
                o.append(last(f"buffer_load_dwordx4 v{vDX}, {srd(sX)}, s{s_kXb} offen lds"))
            else:
                for P in range(5, 9):
                    o.append(f"s_add_u32 m0, s{s_mW}, {sl + (P-5)*4096 - P*64}")
                    o.append(f"buffer_load_dwordx4 v{vDW}, {srd(sW)}, s{s_kW} offen offset:{P*64} lds")
                o.append(f"s_add_u32 m0, s{s_mQ}, {sl}")
                if i < 17:
                    o.append(f"buffer_load_dwordx4 v{vDQ}, {srd(sQ)}, s{s_kQ} offen lds")
                    o.append(f"s_add_u32 s{s_j}, s{s_j}, 1")
                    o.append(f"s_cmp_eq_u32 s{s_j}, 18")
                    o.append(f"s_cselect_b32 s{s_j}, 0, s{s_j}")
                    o.append(f"s_mul_i32 s{s_kW}, s{s_j}, {32*9216}")
                    o.append(f"s_mul_i32 s{s_kQ}, s{s_j}, s{s_qstr}")
                    o.append(f"s_lshl_b32 s{s_kXa}, s{s_j}, 6")
                    o.append(f"s_add_u32 s{s_kXa}, s{s_kXa}, s{s_xrow}")
                    o.append(f"s_add_u32 s{s_kXb}, s{s_kXa}, {64*1152}")
                    o.append(f"s_add_u32 m0, s{s_mX}, {self.xslab(i+1)}")
                    o.append(last(f"buffer_load_dwordx4 v{vDX}, {srd(sX)}, s{s_kXa} offen lds"))
                else:
                    o.append(last(f"buffer_load_dwordx4 v{vDQ}, {srd(sQ)}, s{s_kQ} offen lds"))
        elif d < 54:
            it, z = divmod(d - 36, 2)
            steps = range(0, 5) if z == 0 else range(5, 9)
            for n, s in enumerate(steps):
                o.append(f"s_add_u32 m0, s{s_mD}, {sl + n*4096}")
                t = f"buffer_load_dwordx4 v{vDW}, {srd(sWD)}, s{s_kc+s} offen lds"
                o.append(last(t) if s == steps[-1] else t)
            if z == 1 and it < 8:
                o.append(f"s_add_u32 s{s_it}, s{s_it}, 1")
                o.append(f"s_cmp_eq_u32 s{s_it}, 9")
                o.append(f"s_cselect_b32 s{s_td}, {-8*64 & 0xffffffff}, 64")
                o.append(f"s_cselect_b32 s{s_it}, 0, s{s_it}")
                o.append(f"v_add_u32 v{vDW}, s{s_td}, v{vDW}")
        elif d < 62:
            n = d - 54
            def blk(a, b, d=d):
                def f():
                    self.I(f"s_add_u32 m0, s{s_mX}, {sl + a*1024}")
                    self.I(f"s_add_u32 s{s_td}, s{s_kv}, {n*SLOT + a*1024}")
                    for i in range(b - a):
                        self.grp[d] = self.I(f"buffer_load_dwordx4 v{vDX}, {srd(sWS)}, s{s_td} offen offset:{i*1024} sc1 lds")
                return f
            o += [blk(0, 2), blk(2, 4), blk(4, 5)]
        return self.group(o)
    def ring_barrier(self, d):
        self.em.wait_id(vm_id=self.grp.get(d + 1))
        self.I("s_barrier")

    def a_reads(self, d, t, reg):
        sl = d % NS
        if d % 2 == 1 and t >= 8:
            off = (sl - 1) * SLOT
            if t == 8:
                return [f"ds_read_b64_tr_b16 {ar(reg,2)}, v{vRQ0} offset:{off}",
                        f"ds_read_b64_tr_b16 {ar(reg+2,2)}, v{vRQ0} offset:{off+384}"]
            return [f"ds_read_b64_tr_b16 {ar(reg,2)}, v{vRQ1a} offset:{off}",
                    f"ds_read_b64_tr_b16 {ar(reg+2,2)}, v{vRQ1b} offset:{off}"]
        base = vRA0 if sl < 2 else vRA1
        off = (sl % 2) * SLOT + t * 2048
        return [f"ds_read_b64_tr_b16 {ar(reg,2)}, v{base} offset:{off}",
                f"ds_read_b64_tr_b16 {ar(reg+2,2)}, v{base} offset:{off+512}"]
    def acc1(self, d, t, b):
        half = d % 2
        if half == 1 and t >= 8: return ar(aQ + 16 * (t - 8) + 4 * b)
        j = 5 * half + t // 2
        return vr(G(j, b)) if t % 2 == 0 else ar(aU + 16 * j + 4 * b)
    def acc16(self, d, t):
        half = d % 2
        if half == 1 and t >= 8: return ar(aQ + 16 * (t - 8), 16)
        j = 5 * half + t // 2
        return vr(G(j, 0), 16) if t % 2 == 0 else ar(aU + 16 * j, 16)
    def b_reads(self, i):
        return [f"ds_read_b128 {ar(aB + 16*(i%2) + 4*b)}, v{vRX} offset:{self.xslab(i) + b*1024}" for b in range(4)]

    def arrive(self, off_expr_lines, soff, vtmp):
        def f():
            self.L(off_expr_lines)
            self.I(f"v_mov_b32 v{vtmp}, 1")
            self.I("s_mov_b64 exec, 1")
            self.I(f"buffer_atomic_add v{vtmp}, off, {srd(sDBG)}, s{soff} sc1")
            self.I("s_mov_b64 exec, -1")
        return f
    def drain_dq(self, n):
        k = 0
        while k < n and self.dq:
            x = self.dq.pop(0); x() if callable(x) else self.I(x); k += 1
        return k
    dq = []
    def gemm1(self):
        I, L, em = self.I, self.L, self.em
        AH = 3
        areg = lambda F: aA + 4 * (F % 5)
        vCS, vMB, vSum, vTmp = 48, 60, 66, 90
        self.ring_barrier(-1)
        self.stamp()
        for t in range(AH):
            for x in self.a_reads(0, t, areg(t)): I(x)
        for x in self.b_reads(0): I(x)
        for d in range(36):
            i, half = divmod(d, 2)
            last = (i == 17)
            fill = [[] for _ in range(40)]
            for t in range(10):
                tt = t + AH
                dd, t2 = (d, tt) if tt < 10 else (d + 1, tt - 10)
                if dd < 36:
                    rd = self.a_reads(dd, t2, areg(10 * d + tt))
                    fill[4 * t].append(rd[0]); fill[4 * t + 1].append(rd[1])
            if half == 1 and i < 17:
                for b, x in enumerate(self.b_reads(i + 1)): fill[4 * (10 - AH) + 2 + b + (b // 2) * 2].append(x)
            if d == 35:
                for n, x in enumerate(self.g2_reads(0, 0)): fill[28 + n].append(x)
            csm = {}
            if i < 2:
                for p in range(5):
                    idx = 5 * half + p
                    reg = 48 + 4 * (p % 2)
                    sl = d % NS
                    if idx < 9:
                        base = vRC0 if sl < 2 else vRC1
                        off = (sl % 2) * SLOT + p * 4096
                        r0 = f"ds_read_b64_tr_b16 {vr(reg,2)}, v{base} offset:{off}"
                        r1 = f"ds_read_b64_tr_b16 {vr(reg+2,2)}, v{base} offset:{off+512}"
                    else:
                        off = (sl - 1) * SLOT
                        r0 = f"ds_read_b64_tr_b16 {vr(reg,2)}, v{vRCa} offset:{off}"
                        r1 = f"ds_read_b64_tr_b16 {vr(reg+2,2)}, v{vRCb} offset:{off}"
                    pos = 5 * p
                    fill[pos + 2].append(r0); fill[pos + 3].append(r1)
                    acc = ar(aCS + 4 * (idx // 4))
                    c = "0" if (i == 0 and idx % 4 == 0) else acc
                    sel = ar(aSEL + 4 * (idx % 4)) if i == 0 else vr(vSEL2 + 4 * (idx % 4))
                    csm[pos + 11] = [f"v_mfma_f32_16x16x32_bf16 {acc}, {sel}, {vr(reg)}, {c}"]
            if d == 5: self.q_cs_publish()
            if d == 9:
                self.Qf(self.arrive(f"s_lshl_b32 s{s_t1}, s{s_wv}, 8\ns_add_u32 s{s_t1}, s{s_t1}, {C_A}", s_t1, 48))
            if d == 10: self.q_gemm2_setup()
            if d == 16:
                load, self.pollA = self.poll_counter("A", 48, C_A, 256)
                self.Qf(load)
            if d == 18:
                self.flush(); self.pollA(); self.q_gather(0, vCS, vMB, vSum, vTmp)
            if d in (20, 22, 24): self.q_gather((d - 18) // 2, vCS, vMB, vSum, vTmp)
            if d == 28: self.q_qkv_addr()
            if d == 33: self.flush()
            for m in range(40):
                t, b = divmod(m, 4)
                if m == 4 * (10 - AH):
                    assert not self.dq
                    if d == 8: self.em.wait_id(vm_id=self.cs_id)
                    self.ring_barrier(d)
                    self.dq = self.dma_group(d + 3)
                    if d + 3 == 36: self.dq = [f"v_mov_b32 v{vDW}, v{vWD}"] + self.dq
                a = areg(10 * d + t)
                acc = self.acc1(d, t, b)
                I(f"v_mfma_f32_16x16x32_bf16 {acc}, {ar(a)}, {ar(aB + 16*(i%2) + 4*b)}, {'0' if i == 0 else acc}")
                n = 0
                for x in fill[m]: I(x); n += 1
                for x in csm.get(m, []): I(x)
                n += self.drain_dq(2 - n)
                if last:
                    T = 10 * half + t
                    if b == 2 and T > 0: self.corr(34 + (T - 1) // 10, (T - 1) % 10, vCS, vMB)
                    if b == 1 and T % 2 == 1 and T >= 3: self.q_h((T - 3) // 2)
                    self.fill(3 - n)
                else:
                    self.fill(2 - n)
            if d % 12 == 11: self.stamp()
        self.corr(35, 9, vCS, vMB)
    def corr(self, d, t, vCS, vMB):
        half = d % 2
        if half == 1 and t >= 8: tgp, idx = t - 8, 9
        else: tgp, idx = t % 2, 5 * half + t // 2
        a = vCS + 2 * (3 * tgp + idx // 4)
        acc = self.acc16(d, t)
        self.I(f"v_mfma_f32_16x16x4_4b_bf16 {acc}, {vr(a,2)}, {vr(vMB,2)}, {acc} cbsz:2 abid:{idx%4}")
    def q_cs_publish(self):
        self.Q(f"""
        s_lshl_b32 s{s_t1}, s{s_fc}, 2
        s_lshl_b32 s{s_t2}, s{s_fh}, 1
        s_add_u32 s{s_t1}, s{s_t1}, s{s_t2}
        s_add_u32 s{s_t1}, s{s_t1}, s{s_tg}
        s_lshl_b32 s{s_t1}, s{s_t1}, 4
        s_add_u32 s{s_t1}, s{s_t1}, s{s_rb}
        s_mul_i32 s{s_t1}, s{s_t1}, 768
        s_add_u32 s{s_t1}, s{s_t1}, {WS_CS}
        v_lshlrev_b32 v48, 4, v{vLane}
        v_cmp_gt_u32 vcc, 16, v{vLane}
        v_mov_b32 v49, {OOB}
        v_cndmask_b32 v48, v49, v48, vcc
        """)
        for g in range(3):
            def f(g=g): self.cs_id = self.I(f"buffer_store_dwordx4 {ar(aCS+4*g)}, v48, {srd(sWS)}, s{s_t1} offen offset:{256*g} sc1")
            self.Qf(f)
    def q_gather(self, ph, vCS, vMB, vSum, vTmp):
        Q = self.Q
        vA, vB2 = vRC0, vRC1
        def loads(s, base, packed):
            r = base
            for tgp in range(2):
                Q(f"s_add_u32 s{s_t2}, s{s_k0}, {tgp*16*768 + s*4*768}")
                for g in range(3):
                    if g < 2 or not packed:
                        Q(f"buffer_load_dwordx4 {vr(r)}, v{vA}, {srd(sWS)}, s{s_t2} offen offset:{256*g} sc1"); r += 4
                    else:
                        Q(f"buffer_load_dwordx2 {vr(r,2)}, v{vA}, {srd(sWS)}, s{s_t2} offen offset:{256*g} sc1"); r += 2
        def adds():
            for tgp in range(2):
                for k in range(10):
                    r = vSum + 12 * tgp + k
                    Q(f"v_add_f32 v{r}, v{r}, v{vTmp + 10*tgp + k}")
        if ph == 0:
            Q(f"""
            s_lshl_b32 s{s_t1}, s{s_rb}, 10
            s_lshl_b32 s{s_t2}, s{s_tg}, 9
            s_add_u32 s{s_t1}, s{s_t1}, s{s_t2}
            v_lshlrev_b32 v{vA}, 3, v{vLane}
            buffer_load_dword v{vMB}, v{vA}, {srd(sWS)}, s{s_t1} offen sc1
            v_and_b32 v{vB2}, 0x78, v{vA}
            """)
            for b in range(4):
                Q(f"buffer_load_dword v{vR+b}, v{vB2}, {srd(sWS)}, s{s_t1} offen offset:{128*b+4} sc1")
            Q(f"""
            s_lshl_b32 s{s_k0}, s{s_fc}, 1
            s_add_u32 s{s_k0}, s{s_k0}, s{s_fh}
            s_mul_i32 s{s_k0}, s{s_k0}, {2*16*768}
            s_add_u32 s{s_k0}, s{s_k0}, {WS_CS}
            v_lshrrev_b32 v{vB2}, 4, v{vLane}
            v_mul_u32_u24 v{vB2}, 768, v{vB2}
            v_and_b32 v{vA}, 15, v{vLane}
            v_lshl_add_u32 v{vA}, v{vA}, 4, v{vB2}
            """)
            loads(0, vSum, False); loads(1, vTmp, True)
        elif ph < 3:
            adds(); loads(ph + 1, vTmp, True)
        else:
            adds()
            Q(f"""
            v_xor_b32 v{vMB}, 0x80000000, v{vMB}
            v_lshrrev_b32 v{vMB+1}, 16, v{vMB}
            v_or_b32 v{vMB}, v{vMB}, v{vMB+1}
            """)
            for g6 in range(0, 6, 2):
                rs = (vSum + 4 * g6, vSum + 4 * g6 + 4); as_ = (vCS + 2 * g6, vCS + 2 * g6 + 2)
                tpl = ["v_permlane16_swap_b32 v{r}, v{r1}", "v_permlane16_swap_b32 v{r2}, v{r3}", "v_add_f32 v{r}, v{r}, v{r1}",
                       "v_add_f32 v{r2}, v{r2}, v{r3}", "s_nop 0", "v_permlane32_swap_b32 v{r}, v{r2}", "v_add_f32 v{r}, v{r}, v{r2}",
                       "v_and_b32 v{r1}, 0xffff0000, v{r}", "v_sub_f32 v{r1}, v{r}, v{r1}", "v_and_b32 v{r2}, 0xffff0000, v{r1}",
                       "v_sub_f32 v{r3}, v{r1}, v{r2}", "v_lshrrev_b32 v{r}, 16, v{r}", "v_or_b32 v{a}, v{r}, v{r2}",
                       "v_lshrrev_b32 v{a1}, 16, v{r3}"]
                for x in tpl:
                    if x == "s_nop 0": continue
                    for r, a in zip(rs, as_):
                        Q(x.format(r=r, r1=r+1, r2=r+2, r3=r+3, a=a, a1=a+1))
            Q(f"""
            s_mul_i32 s{s_t1}, s{s_tg}, 36864
            s_lshl_b32 s{s_t2}, s{s_fh}, 9
            s_add_u32 s{s_t1}, s{s_t1}, {L_H}
            s_add_u32 s{s_t1}, s{s_t1}, s{s_t2}
            v_lshlrev_b32 v{vRCa}, 3, v{vLane}
            v_add_u32 v{vRCa}, s{s_t1}, v{vRCa}
            v_xor_b32 v{vRCb}, 512, v{vRCa}
            """)
    hw = {}
    def q_h(self, j):
        for b in range(4):
            g = G(j, b); u = aU + 16 * j + 4 * b; t = vHT + 4 * (b % 2)
            for k in range(4): self.Q(f"v_accvgpr_read_b32 v{t+k}, a{u+k}")
            for k in range(4): self.Q(f"v_mul_f32 v{g+k}, v{g+k}, v{t+k}")
            self.Q(f"v_cvt_pk_bf16_f32 v{g}, v{g}, v{g+1}")
            self.Q(f"v_cvt_pk_bf16_f32 v{g+1}, v{g+2}, v{g+3}")
            def w(g=g, j=j, b=b): self.hw[(j, b)] = self.I(f"ds_write_b64 v{vRCa}, {vr(g,2)} offset:{(4*j+b)*1024}")
            self.Qf(w)
    def h_reads(self, js):
        return [f"ds_read_b64 {vr(G(j,b)+2,2)}, v{vRCb} offset:{(4*j+b)*1024}" for b in range(4) for j in js]
    def q_gemm2_setup(self):
        for s in range(9): self.Q(f"s_mov_b32 s{s_kc+s}, {s*36864}")
        self.Q(f"""
        s_cmp_ge_u32 s{s_rb}, 9
        s_cselect_b32 s{s_t1}, 9, 0
        s_sub_u32 s{s_it}, s{s_rb}, s{s_t1}
        s_mov_b32 s{s_its}, s{s_it}
        s_mul_i32 s{s_pb}, s{s_rb}, {18*16*8192}
        s_lshl_b32 s{s_t1}, s{s_fc}, 13
        s_add_u32 s{s_pb}, s{s_pb}, s{s_t1}
        s_mul_i32 s{s_t1}, s{s_fh}, {9*131072}
        s_add_u32 s{s_pb}, s{s_pb}, s{s_t1}
        s_lshl_b32 s{s_t1}, s{s_tg}, 12
        s_add_u32 s{s_pb}, s{s_pb}, s{s_t1}
        s_add_u32 s{s_pb}, s{s_pb}, {WS_PART}
        s_mov_b32 s{s_mD}, s{s_mW}
        v_lshrrev_b32 v{vWD}, 2, v{vLane}
        s_mul_i32 s{s_t1}, s{s_fc}, 288
        s_lshl_b32 s{s_t2}, s{s_fh}, 4
        s_add_u32 s{s_t1}, s{s_t1}, s{s_t2}
        v_add_u32 v{vWD}, s{s_t1}, v{vWD}
        v_mul_u32_u24 v{vWD}, 1152, v{vWD}
        v_bfe_u32 v48, v{vLane}, 4, 1
        v_lshlrev_b32 v49, 1, v48
        v_and_b32 v50, 3, v{vLane}
        v_xor_b32 v49, v49, v50
        v_lshl_add_u32 v{vWD}, v49, 4, v{vWD}
        s_mul_i32 s{s_t1}, s{s_tg}, 576
        s_lshl_b32 s{s_t2}, s{s_it}, 6
        s_add_u32 s{s_t1}, s{s_t1}, s{s_t2}
        v_add_u32 v{vWD}, s{s_t1}, v{vWD}
        v_lshrrev_b32 v51, 5, v{vLane}
        v_bfe_u32 v52, v{vLane}, 2, 3
        v_lshlrev_b32 v52, 6, v52
        v_lshl_add_u32 v52, v51, 9, v52
        v_lshl_add_u32 v52, v48, 5, v52
        v_lshl_add_u32 v52, v50, 3, v52
        s_mul_i32 s{s_t1}, s{s_fh}, 3072
        v_add_u32 v{vRD}, s{s_t1}, v52
        v_xor_b32 v{vRD+1}, 1024, v{vRD}
        v_xor_b32 v{vRD+2}, 32, v{vRD}
        v_xor_b32 v{vRD+3}, 1056, v{vRD}
        """)
        for k in range(4): self.Q(f"v_add_u32 v{vRD+4+k}, {2*SLOT}, v{vRD+k}")

    QX = [228, 232, 236, 240, 244]; QY = [196, 200, 204, 208, 248]
    def g2_reads(self, dsub, u):
        z = dsub % 2; d = 36 + dsub; sl = d % NS
        quads = self.QX if u == 0 else self.QY
        o = []
        for n in range(5 if z == 0 else 4):
            for r in range(2):
                base = vRD + 2 * u + r + (4 if sl >= 2 else 0)
                o.append(f"ds_read_b64_tr_b16 {ar(quads[n]+2*r,2)}, v{base} offset:{(sl%2)*SLOT + n*4096}")
        return o
    def acc2(self, it): return 80 if it % 2 == 0 else 48
    def q_g2_epi(self, it):
        A = self.acc2(it)
        assert not self.pq
        self.Q(f"s_lshl_b32 s{s_ps}, s{s_its}, 17", True)
        self.Q(f"s_add_u32 s{s_ps}, s{s_ps}, s{s_pb}", True)
        for b in range(4):
            r = A + 8 * b
            for k in range(4): self.Q(f"v_cvt_pk_bf16_f32 v{r+k}, v{r+2*k}, v{r+2*k+1}", True)
            def f(r=r, b=b): self.part_id = self.I(f"buffer_store_dwordx4 {vr(r)}, v{vDQ}, {srd(sWS)}, s{s_ps} offen offset:{b*1024} sc1")
            self.Qf(f, True)
        self.Q(f"""
        s_add_u32 s{s_its}, s{s_its}, 1
        s_cmp_eq_u32 s{s_its}, 9
        s_cselect_b32 s{s_its}, 0, s{s_its}
        """, True)
    def gemm2(self):
        I, em = self.I, self.em
        while (4, 3) not in self.hw: self.fill(1)
        em.wait_id(lg_id=self.hw[(4, 3)])
        I("s_barrier")
        for x in self.h_reads(range(5)): I(x)
        self.Q(f"v_lshlrev_b32 v{vDQ}, 4, v{vLane}")
        self.stamp()
        for dsub in range(18):
            it, z = divmod(dsub, 2)
            d = 36 + dsub
            steps = list(range(0, 5)) if z == 0 else list(range(5, 9))
            ns = len(steps)
            A = self.acc2(it)
            if z == 0 and it > 0: self.q_g2_epi(it - 1)
            if dsub == 1: self.q_qkv_epilogue()
            if dsub == 5:
                self.Qf(self.arrive(f"""s_lshl_b32 s{s_t1}, s{s_wv}, 8
                s_cmp_lt_u32 s{s_fc}, 4
                s_cselect_b32 s{s_t1}, s{s_t1}, 256
                s_add_u32 s{s_t1}, s{s_t1}, {C_B}""", s_t1, vHT))
            if dsub == 8: self.q_attn_setup()
            if dsub == 17:
                for k in range(32): self.Q(f"v_mov_b32 v{vO+k}, 0")
            if dsub == 13:
                load, self.pollB = self.poll_counter("B", vHT, C_B, 64)
                self.Qf(load)
            for u in range(2):
                quads = self.QX if u == 0 else self.QY
                nxt = self.g2_reads(dsub, 1) if u == 0 else (self.g2_reads(dsub + 1, 0) if dsub < 17 else [])
                m = 0
                for b in range(4):
                    acc = vr(A + 8 * b + 4 * u)
                    for n, s in enumerate(steps):
                        if u == 1 and b == 1 and n == 0:
                            assert not self.dq
                            if dsub == 0:
                                self.flush(); em.wait_id(lg_id=self.hw[(8, 3)])
                            if dsub == 4: self.flush(); em.wait_id(vm_id=self.kv_id)
                            if dsub == 15: self.flush(); self.pollB()
                            self.ring_barrier(d)
                            self.dq = self.dma_group(d + 3)
                            if dsub == 17: nxt = self.attn_first_reads()
                            if dsub == 0: nxt = self.h_reads(range(5, 9))[:4] + nxt + self.h_reads(range(5, 9))[4:]
                        c = "0" if (z == 0 and n == 0) else acc
                        I(f"v_mfma_f32_16x16x32_bf16 {acc}, {ar(quads[n])}, {vr(G(s, b))}, {c}")
                        k = 0
                        if (u == 0 or b >= 1):
                            lim = 2 if dsub == 0 else 1
                            while nxt and k < lim: I(nxt.pop(0)); k += 1
                        k += self.drain_dq(2 - k)
                        self.fill((3 if dsub == 0 else 2) - k)
                        m += 1
                assert not nxt, (dsub, u, nxt)
        self.q_g2_epi(8)
        self.stamp()
    def q_qkv_addr(self):
        Q = self.Q
        vQW, vQ2W, vVW, vKa, vKb, vV, kq, vq, vn = 36, 37, 38, 39, 40, 41, 42, 46, 35
        t0 = vHT
        LD = L_QS + 16384
        Q(f"""
        v_lshrrev_b32 v{vq}, 4, v{vLane}
        v_and_b32 v{vn}, 15, v{vLane}
        s_lshl_b32 s{s_qs}, s{s_wv}, 12
        s_add_u32 s{s_qs}, s{s_qs}, {L_QS}
        v_lshlrev_b32 v{vQW}, 5, v{vn}
        v_lshl_add_u32 v{vQW}, v{vq}, 3, v{vQW}
        v_add_u32 v{vQW}, s{s_qs}, v{vQW}
        v_cmp_eq_u32 vcc, 0, v{vq}
        v_mov_b32 v{t0}, {LD}
        s_add_u32 s{s_t1}, s{s_qs}, 2048
        v_mov_b32 v{t0+1}, s{s_t1}
        v_cndmask_b32 v{vQ2W}, v{t0}, v{t0+1}, vcc
        v_lshl_add_u32 v{vQ2W}, v{vn}, 2, v{vQ2W}
        v_mov_b32 v{t0+2}, {hex(f2u(CQ))}
        v_cndmask_b32 v{kq}, 1.0, v{t0+2}, vcc
        s_mov_b32 s{s_mk}, 0xffff0000
        s_mov_b32 s{s_mk+1}, 0xffff
        s_add_u32 s{s_t1}, s{s_qs}, {2560-8}
        v_mov_b32 v{t0+1}, s{s_t1}
        v_cndmask_b32 v{vVW}, v{t0}, v{t0+1}, s[{s_mk}:{s_mk+1}]
        v_lshl_add_u32 v{vVW}, v{vn}, 4, v{vVW}
        v_lshl_add_u32 v{vVW}, v{vq}, 3, v{vVW}
        s_lshr_b32 s{s_t1}, s{s_rb}, 1
        s_mul_i32 s{s_k1}, s{s_t1}, {SLOT}
        s_add_u32 s{s_k1}, s{s_k1}, {WS_KV}
        s_and_b32 s{s_t1}, s{s_rb}, 1
        s_lshl_b32 s{s_t1}, s{s_t1}, 1
        s_add_u32 s{s_k2}, s{s_t1}, s{s_tg}
        s_lshl_b32 s{s_t1}, s{s_k2}, 11
        s_lshl_b32 s{s_t2}, s{s_fh}, 9
        s_add_u32 s{s_t1}, s{s_t1}, s{s_t2}
        s_sub_u32 s{s_t1}, s{s_t1}, 8
        s_lshl_b32 s{s_t2}, s{s_k2}, 9
        s_add_u32 s{s_t2}, s{s_t2}, {8192-16}
        s_cmp_eq_u32 s{s_fc}, 0
        s_cselect_b32 s{s_t1}, s{s_t1}, s{s_t2}
        s_cselect_b32 s{s_t2}, 1024, 8
        s_cselect_b32 s{s_mk}, 0xffff0000, 0
        s_add_u32 s{s_t1}, s{s_t1}, s{s_k1}
        s_lshl_b32 s{s_t3}, s{s_fc}, 1
        s_add_u32 s{s_t3}, s{s_t3}, s{s_fh}
        s_cmp_lt_u32 s{s_t3}, 3
        s_cselect_b32 s{s_mk+1}, 0xffff, 0
        v_lshlrev_b32 v{t0}, 4, v{vn}
        v_lshl_add_u32 v{t0}, v{vq}, 3, v{t0}
        v_add_u32 v{t0}, s{s_t1}, v{t0}
        v_mov_b32 v{t0+1}, {OOB}
        v_cndmask_b32 v{vKa}, v{t0+1}, v{t0}, s[{s_mk}:{s_mk+1}]
        v_add_u32 v{vKb}, s{s_t2}, v{vKa}
        s_andn2_b32 s{s_t1}, s{s_t3}, 4
        s_cmp_eq_u32 s{s_t1}, 2
        s_cselect_b32 s{s_mf+1}, 0xffff, 0
        s_mov_b32 s{s_mf}, 0
        s_cmp_eq_u32 s{s_t3}, 6
        s_cselect_b32 s{s_k3}, 0x3f80, 0
        s_cselect_b32 s{s_t1}, 2, 0
        v_and_b32 v{t0}, 3, v{vLane}
        v_xor_b32 v{t0}, s{s_t1}, v{t0}
        s_mov_b32 s{s_t1}, {OOB}
        s_cselect_b32 s{s_t2}, {12*16}, s{s_t1}
        s_cmp_eq_u32 s{s_t3}, 4
        s_cselect_b32 s{s_t1}, 0, s{s_t1}
        s_cselect_b32 s{s_t2}, {8*16}, s{s_t2}
        s_cmp_eq_u32 s{s_t3}, 5
        s_cselect_b32 s{s_t1}, {16*16}, s{s_t1}
        s_cselect_b32 s{s_t2}, {4*16}, s{s_t2}
        v_mov_b32 v{t0+1}, s{s_t1}
        v_mov_b32 v{t0+2}, s{s_t2}
        v_and_b32 v{t0+3}, 4, v{vLane}
        v_cmp_eq_u32 vcc, 0, v{t0+3}
        v_cndmask_b32 v{t0+1}, v{t0+2}, v{t0+1}, vcc
        v_lshl_add_u32 v{t0}, v{t0}, 4, v{t0+1}
        v_and_b32 v{t0+1}, 8, v{vLane}
        v_add_u32 v{t0}, v{t0}, v{t0+1}
        v_mul_u32_u24 v{t0+1}, 320, v{vq}
        s_mul_i32 s{s_t1}, s{s_k2}, 2560
        s_add_u32 s{s_t1}, s{s_t1}, s{s_k1}
        s_add_u32 s{s_t1}, s{s_t1}, 10240
        v_add3_u32 v{vV}, v{t0}, v{t0+1}, s{s_t1}
        """)
    def q_qkv_epilogue(self):
        Q = self.Q
        vQW, vQ2W, vVW, vKa, vKb, vV, kq, vq = 36, 37, 38, 39, 40, 41, 42, 46
        t0, t1 = vHT, vHT + 4
        f = 43
        for b in range(4):
            t = t0 if b % 2 == 0 else t1
            Q(f"v_mul_f32 v{f}, v{vR+b}, v{kq}")
            for k in range(4): Q(f"v_accvgpr_read_b32 v{t+k}, a{aQ+16+4*b+k}")
            for k in range(4): Q(f"v_mul_f32 v{t+k}, v{t+k}, v{f}")
            Q(f"""
            v_cvt_pk_bf16_f32 v{t}, v{t}, v{t+1}
            v_cvt_pk_bf16_f32 v{t+1}, v{t+2}, v{t+3}
            v_mov_b32 v{t+2}, s{s_k3}
            v_cndmask_b32 v{t}, v{t}, v{t+2}, s[{s_mf}:{s_mf+1}]
            ds_write_b32 v{vQ2W}, v{t+1} offset:{64*b}
            ds_write_b64 v{vVW}, {vr(t,2)} offset:{256*b}
            buffer_store_dwordx2 {vr(t,2)}, v{vKa if b < 2 else vKb}, {srd(sWS)}, 0 offen offset:{256*(b%2)} sc1
            """)
        for b in range(4):
            t = t0 if b % 2 == 0 else t1
            Q(f"v_mul_f32 v{f}, {hex(f2u(CQ))}, v{vR+b}")
            for k in range(4): Q(f"v_accvgpr_read_b32 v{t+k}, a{aQ+4*b+k}")
            for k in range(4): Q(f"v_mul_f32 v{t+k}, v{t+k}, v{f}")
            Q(f"""
            v_cvt_pk_bf16_f32 v{t}, v{t}, v{t+1}
            v_cvt_pk_bf16_f32 v{t+1}, v{t+2}, v{t+3}
            ds_write_b64 v{vQW}, {vr(t,2)} offset:{512*b}
            """)
        Q(f"""
        v_bfe_u32 v{t0}, v{vLane}, 2, 2
        v_lshl_add_u32 v{t0}, v{vq}, 3, v{t0}
        v_bfe_u32 v{t0+1}, v{vLane}, 1, 1
        v_lshl_add_u32 v{t0}, v{t0+1}, 2, v{t0}
        v_lshlrev_b32 v{t0}, 4, v{t0}
        v_and_b32 v{t0+1}, 1, v{vLane}
        v_lshl_add_u32 v{t0}, v{t0+1}, 3, v{t0}
        s_add_u32 s{s_t1}, s{s_qs}, 2560
        v_add_u32 v{t0}, s{s_t1}, v{t0}
        v_and_b32 v{t0+1}, 31, v{vLane}
        v_lshlrev_b32 v{t0+1}, 5, v{t0+1}
        v_lshrrev_b32 v{t0+2}, 5, v{vLane}
        v_lshl_add_u32 v{t0+1}, v{t0+2}, 4, v{t0+1}
        v_add_u32 v{t0+1}, s{s_qs}, v{t0+1}
        v_lshlrev_b32 v{t0+2}, 2, v{vLane}
        v_add_u32 v{t0+2}, s{s_qs}, v{t0+2}
        ds_read_b64_tr_b16 {vr(t1,2)}, v{t0}
        ds_read_b64_tr_b16 {vr(t1+2,2)}, v{t0} offset:512
        ds_read_b128 {vr(vQ0)}, v{t0+1}
        ds_read_b32 v{vQ2+1}, v{t0+2} offset:2048
        v_mov_b32 v{vQ2}, 0
        s_nop 0
        s_nop 0
        s_nop 0
        s_nop 0
        s_nop 0
        s_nop 0
        buffer_store_dwordx2 {vr(t1,2)}, v{vV}, {srd(sWS)}, 0 offen sc1
        """)
        def f2(): self.kv_id = self.I(f"buffer_store_dwordx2 {vr(t1+2,2)}, v{vV}, {srd(sWS)}, 0 offen offset:1280 sc1")
        self.Qf(f2)
        Q(f"ds_read_b128 {vr(vQ0+4)}, v{t0+1} offset:1024")

    aK1 = 180; aK2 = 188; aV = 212; aSZ = 244
    PB = [196, 200, 204, 208, 228, 232, 236, 240]
    def q_attn_setup(self):
        t = vHT
        self.Q(f"""
        v_lshlrev_b32 v{vDX}, 4, v{vLane}
        s_mul_i32 s{s_mX}, s{s_wv}, 5120
        s_add_u32 s{s_kv}, s{s_mX}, {WS_KV}
        v_lshlrev_b32 v{vK1}, 4, v{vLane}
        v_add_u32 v{vK1+1}, {2*SLOT}, v{vK1}
        v_and_b32 v{t}, 31, v{vLane}
        v_lshlrev_b32 v{vK2}, 4, v{t}
        v_add_u32 v{vK2}, 8192, v{vK2}
        v_add_u32 v{vK2+1}, {2*SLOT}, v{vK2}
        v_lshrrev_b32 v{t+1}, 2, v{t}
        v_lshlrev_b32 v{t+1}, 3, v{t+1}
        v_mov_b32 v{t+2}, 0x04081000
        v_lshrrev_b32 v{t+1}, v{t+1}, v{t+2}
        v_and_b32 v{t+1}, 0xff, v{t+1}
        v_and_b32 v{t+2}, 3, v{t}
        v_add_u32 v{t+1}, v{t+1}, v{t+2}
        v_subrev_u32 v{t+2}, 4, v{t}
        v_min_u32 v{t+2}, 15, v{t+2}
        v_cmp_eq_u32 vcc, 20, v{t}
        v_cndmask_b32 v{t+2}, v{t+2}, 14, vcc
        v_cmp_gt_u32 vcc, 16, v{t}
        v_cndmask_b32 v{t+1}, v{t+2}, v{t+1}, vcc
        v_lshrrev_b32 v{t+3}, 5, v{vLane}
        v_mul_u32_u24 v{t+2}, 320, v{t+3}
        v_lshl_add_u32 v{t+1}, v{t+1}, 4, v{t+2}
        v_add_u32 v{vVv}, 10240, v{t+1}
        v_add_u32 v{vVv+1}, {2*SLOT}, v{vVv}
        s_lshr_b32 s{s_tq}, s{s_fc}, 2
        s_and_b32 s{s_cq}, s{s_fc}, 3
        s_mul_i32 s{s_t1}, s{s_cq}, 9
        s_lshr_b32 s{s_k1}, s{s_t1}, 1
        s_lshl_b32 s{s_t1}, s{s_k1}, 6
        v_lshrrev_b32 v{t+1}, 2, v{vLane}
        v_and_b32 v{t+2}, 3, v{vLane}
        v_lshlrev_b32 v{t+2}, 4, v{t+2}
        v_add_u32 v{t+2}, s{s_t1}, v{t+2}
        v_mul_u32_u24 v{vWm}, 1152, v{t+1}
        v_add_u32 v{vWm}, v{vWm}, v{t+2}
        v_lshrrev_b32 v{vWr}, 3, v{vLane}
        v_mul_u32_u24 v{vWr}, 18, v{vWr}
        v_and_b32 v{t+1}, 1, v{t+1}
        v_add3_u32 v{vWr}, v{vWr}, v{t+1}, 16
        v_mul_u32_u24 v{vWr}, 1152, v{vWr}
        v_add_u32 v{vWr}, v{vWr}, v{t+2}
        s_mul_i32 s{s_wo}, s{s_wv}, {144*1152}
        s_mul_i32 s{s_mWO}, s{s_wv}, 10240
        s_add_u32 s{s_mWO}, s{s_mWO}, {L_WO}
        v_bfe_u32 v{t+1}, v{vLane}, 2, 2
        v_lshl_add_u32 v{t+1}, v{t+3}, 3, v{t+1}
        v_lshlrev_b32 v{t+1}, 6, v{t+1}
        v_bfe_u32 v{t+2}, v{vLane}, 4, 1
        v_lshl_add_u32 v{t+1}, v{t+2}, 5, v{t+1}
        v_and_b32 v{vWt}, 3, v{vLane}
        v_lshl_add_u32 v{t+1}, v{vWt}, 3, v{t+1}
        v_add_u32 v{vWt}, s{s_mWO}, v{t+1}
        v_lshlrev_b32 v{t+2}, 10, v{t+2}
        v_lshl_add_u32 v{t+2}, v{t+3}, 8, v{t+2}
        v_and_b32 v{t+1}, 15, v{vLane}
        v_lshl_add_u32 v{vAb}, v{t+1}, 4, v{t+2}
        s_mul_i32 s{s_ab}, s{s_rb}, {18*16*8192}
        s_lshl_b32 s{s_t1}, s{s_k1}, 17
        s_add_u32 s{s_ab}, s{s_ab}, s{s_t1}
        s_lshl_b32 s{s_t1}, s{s_wv}, 15
        s_add_u32 s{s_ab}, s{s_ab}, s{s_t1}
        s_lshl_b32 s{s_t1}, s{s_tq}, 11
        s_add_u32 s{s_ab}, s{s_ab}, s{s_t1}
        s_add_u32 s{s_ab}, s{s_ab}, {WS_PART}
        """)
    def kv_base(self, t, v):
        sl = (54 + t // 8) % NS
        return (v + (1 if sl >= 2 else 0), (sl % 2) * SLOT)
    def rd_k1(self, t):
        b, o = self.kv_base(t, vK1); return f"ds_read_b128 {ar(self.aK1+4*(t%2))}, v{b} offset:{o + (t%8)*1024}"
    def rd_k2(self, t):
        b, o = self.kv_base(t, vK2); return f"ds_read_b128 {ar(self.aK2+4*((t//2)%2))}, v{b} offset:{o + ((t%8)//2)*512}"
    def rd_v(self, t, s):
        b, o = self.kv_base(t, vVv); return f"ds_read_b128 {ar(self.aV+8*(t%2)+4*s)}, v{b} offset:{o + (t%8)*1280 + s*640}"
    def attn_first_reads(self):
        return [self.rd_k2(0), self.rd_k1(0), self.rd_k1(1), self.rd_v(0, 0), self.rd_v(0, 1)]
    def qk(self, t):
        S = vS + 32 * (t % 2); k2 = self.aK2 + 4 * ((t // 2) % 2) + 2 * (t % 2); k1 = self.aK1 + 4 * (t % 2)
        return [f"v_mfma_f32_32x32x4_2b_bf16 {vr(S,32)}, {ar(k2,2)}, {vr(vQ2,2)}, 0",
                f"v_mfma_f32_32x32x16_bf16 {vr(S,16)}, {ar(k1)}, {vr(vQ0)}, {vr(S,16)}",
                f"v_mfma_f32_32x32x16_bf16 {vr(S+16,16)}, {ar(k1)}, {vr(vQ0+4)}, {vr(S+16,16)}"]
    def smf(self, t, q):
        P = vS + 32 * (t % 2) + 8 * q; O = vO + 16 * (q // 2)
        return f"v_smfmac_f32_32x32x32_bf16 {vr(O,16)}, {ar(self.aV+8*(t%2)+4*(q%2))}, {vr(P,8)}, v{vIDX}"
    PLAN = "ee" "pwx" "eee" "mx" "eeeeeee" "sxx" "eeeeee" "sxx" "eee" "mx" "eee" "mx" "eee" "sxx" "eeeee"
    def wo_dma(self, c):
        o = [f"s_add_u32 s{s_k2}, s{s_wo}, {c*18*1152 if c < 8 else 0}"]
        for P in range(5):
            o.append(f"s_add_u32 m0, s{s_mWO}, {(c%2)*5120 + P*1024 - P*64}")
            t = f"buffer_load_dwordx4 v{vWm if c < 8 else vWr}, {srd(sWO)}, s{s_k2} offen offset:{P*64} lds"
            if P == 4:
                def f(t=t, c=c): self.wo_id[c] = self.I(t)
                o.append(f)
            else: o.append(t)
        return o
    wo_id = {}
    def wo_reads(self, c):
        o = [lambda c=c: self.em.wait_id(vm_id=self.wo_id[c])]
        for P in range(5):
            for r in range(2):
                o.append(f"ds_read_b64_tr_b16 {ar(20*c+4*P+2*r,2)}, v{vWt} offset:{(c%2)*5120 + P*1024 + r*256}")
        return o
    def q_sel(self):
        t = vHT
        self.Q(f"""
        v_and_b32 v{t}, 31, v{vLane}
        v_lshrrev_b32 v{t+1}, 5, v{vLane}
        v_lshlrev_b32 v{t+1}, 2, v{t+1}
        v_sub_u32 v{t}, v{t}, v{t+1}
        v_mov_b32 v{t+2}, 0x3f80
        v_mov_b32 v{t+3}, 0x3f800000
        """)
        for z in range(2):
            for k in range(4):
                m0 = 16 * (k // 2) + 8 * z + 2 * (k % 2)
                self.Q(f"""
                v_cmp_eq_u32 vcc, {m0}, v{t}
                v_cndmask_b32 v{t+1}, 0, v{t+2}, vcc
                v_cmp_eq_u32 vcc, {m0+1}, v{t}
                v_cndmask_b32 v{t+1}, v{t+1}, v{t+3}, vcc
                v_accvgpr_write_b32 a{self.aSZ+4*z+k}, v{t+1}
                """)
    def q_final_setup(self):
        t = vHT
        self.Q(f"""
        s_lshl_b32 s{s_t1}, s{s_rb}, 10
        s_lshl_b32 s{s_t2}, s{s_tg}, 9
        s_add_u32 s{s_t1}, s{s_t1}, s{s_t2}
        v_and_b32 v{t}, 31, v{vLane}
        v_lshlrev_b32 v{t}, 3, v{t}
        buffer_load_dword v{vR32}, v{t}, {srd(sWS)}, s{s_t1} offen offset:4 sc1
        buffer_load_dword v{vR32+1}, v{t}, {srd(sWS)}, s{s_t1} offen offset:260 sc1
        s_lshl_b32 s{s_t1}, s{s_rb}, 7
        s_lshl_b32 s{s_t2}, s{s_tq}, 5
        s_add_u32 s{s_t1}, s{s_t1}, s{s_t2}
        s_lshl_b32 s{s_t2}, s{s_wv}, 3
        s_add_u32 s{s_k0}, s{s_t1}, s{s_t2}
        s_mul_i32 s{s_k3}, s{s_cq}, 288
        s_mul_i32 s{s_t2}, s{s_t2}, {RED_RS}
        s_and_b32 s{s_t1}, s{s_cq}, 1
        s_lshl_b32 s{s_t1}, s{s_t1}, 6
        s_add_u32 s{s_qs}, s{s_t1}, s{s_t2}
        """)
        for rr in range(3):
            vx = vX + 8 * rr
            self.Q(f"""
            v_add_u32 v{t}, {64*rr}, v{vLane}
            v_mul_u32_u24 v{t+1}, 3641, v{t}
            v_lshrrev_b32 v{t+1}, 16, v{t+1}
            v_mul_u32_u24 v{t+2}, 18, v{t+1}
            v_sub_u32 v{t+2}, v{t}, v{t+2}
            v_mul_u32_u24 v{vx+6}, {RED_RS}, v{t+1}
            v_lshl_add_u32 v{vx+6}, v{t+2}, 5, v{vx+6}
            v_add_u32 v{vx+6}, s{s_qs}, v{vx+6}
            v_add_u32 v{t+1}, s{s_k0}, v{t+1}
            v_mul_u32_u24 v{vx+5}, 1152, v{t+1}
            v_lshl_add_u32 v{vx+5}, v{t+2}, 4, v{vx+5}
            v_add_u32 v{vx+5}, s{s_k3}, v{vx+5}
            v_lshlrev_b32 v{t+1}, 3, v{t+1}
            """)
            if rr == 2:
                self.Q(f"""
                v_cmp_gt_u32 vcc, 16, v{vLane}
                v_mov_b32 v{t+2}, {OOB}
                v_cndmask_b32 v{vx+5}, v{t+2}, v{vx+5}, vcc
                v_cndmask_b32 v{t+1}, v{t+2}, v{t+1}, vcc
                v_cndmask_b32 v{vx+6}, 0, v{vx+6}, vcc
                """)
            self.Q(f"""
            buffer_load_dwordx4 {vr(vx)}, v{vx+5}, {srd(sX)}, 0 offen
            buffer_load_dword v{vx+4}, v{t+1}, {srd(sWS)}, 0 offen offset:4 sc1
            """)
        self.o_addr(18, 19, emit=self.Q)
        self.Q(f"""
        s_lshl_b32 s{s_t1}, s{s_rb}, 2
        s_add_u32 s{s_t1}, s{s_t1}, s{s_tq}
        s_mul_i32 s{s_k1}, s{s_t1}, 36864
        s_add_u32 s{s_k1}, s{s_k1}, {WS_O}
        s_lshl_b32 s{s_t1}, s{s_wv}, 10
        s_add_u32 s{s_k2}, s{s_k1}, s{s_t1}
        s_add_u32 s{s_k2}, s{s_k2}, 32768
        s_lshl_b32 s{s_t1}, s{s_wv}, 13
        s_add_u32 s{s_k1}, s{s_k1}, s{s_t1}
        v_and_b32 v{t}, 31, v{vLane}
        v_mul_u32_u24 v{t}, {RED_RS}, v{t}
        v_lshrrev_b32 v{t+1}, 5, v{vLane}
        v_lshl_add_u32 v{t}, v{t+1}, 4, v{t}
        s_mul_i32 s{s_t1}, s{s_wv}, {32*RED_RS}
        v_add_u32 v20, s{s_t1}, v{t}
        """)
    def attention(self):
        I, em = self.I, self.em
        R_WO, R_SC, R_AB = 8, 27, 30
        qk0 = self.qk(0)
        I(qk0[0])
        self.flush()
        I(qk0[1]); I(qk0[2])
        em.wait_all(vm=False)
        self.q_sel()
        self.fill(10)
        absorb = [(P, f, z) for P in range(5) for f in range(4) for z in range(2)]
        for kt in range(64):
            cur = vS + 32 * (kt % 2)
            xq = []
            if kt + 2 < 64:
                if kt % 2 == 0: xq.append(self.rd_k2(kt + 2))
                xq.append(self.rd_k1(kt + 2))
            if kt + 1 < 64: xq += [self.rd_v(kt + 1, 0), self.rd_v(kt + 1, 1)]
            ex = []
            if kt >= R_WO and (kt - R_WO) % 2 == 0 and (kt - R_WO) // 2 < 9: ex += self.wo_dma((kt - R_WO) // 2)
            if kt >= R_WO + 2 and (kt - R_WO - 2) // 2 < 9:
                rd = self.wo_reads((kt - R_WO - 2) // 2)
                ex += rd[:6] if (kt - R_WO) % 2 == 0 else rd[6:]
            if kt == R_SC:
                load, self.pollC = self.poll_counter("C", 21, f"s{s_k3}", 16)
                ex += [f"s_lshl_b32 s{s_k3}, s{s_rb}, 2", f"s_add_u32 s{s_k3}, s{s_k3}, {C_C}", load]
            am = []
            if R_AB <= kt < R_AB + 20:
                n = 2 * (kt - R_AB); P, f, _ = absorb[n]
                ex.append(f"s_add_u32 s{s_k2}, s{s_ab}, {P*131072 + f*8192}")
                for z in range(2):
                    ex.append(f"buffer_load_dwordx4 {ar(self.PB[(n+z)%8])}, v{vAb}, {srd(sWS)}, s{s_k2} offen offset:{512*z} sc1")
            if R_AB + 3 <= kt < R_AB + 23:
                n = 2 * (kt - R_AB - 3)
                for z in range(2):
                    P, f, _ = absorb[n + z]
                    acc = vr(vF + 16 * P, 16)
                    am.append(f"v_mfma_f32_32x32x16_bf16 {acc}, {ar(self.aSZ+4*z)}, {ar(self.PB[(n+z)%8])}, {'0' if (f == 0 and z == 0) else acc}")
            if kt == R_AB + 21: self.q_final_setup()
            if kt == R_AB: self.flush(); self.pollC()
            if kt % 8 == 6 and kt < 56:
                n = kt // 8 + 1
                assert not self.dq
                if kt == 14: em.wait_id(vm_id=self.part_id)
                self.ring_barrier(53 + n)
                self.dq = self.dma_group(56 + n)
                if kt == 14:
                    ex.append(self.arrive(f"""s_lshl_b32 s{s_t1}, s{s_wv}, 8
                    s_lshl_b32 s{s_t2}, s{s_rb}, 2
                    s_add_u32 s{s_t1}, s{s_t1}, s{s_t2}
                    s_add_u32 s{s_t1}, s{s_t1}, {C_C}""", s_t1, 21))
            qk = self.qk(kt + 1) if kt < 63 else []
            e = sm = 0
            nx = self.PLAN.count('x'); seen = 0
            for c in self.PLAN:
                if c == 'e':
                    I(f"v_exp_f32 v{cur+e}, v{cur+e}"); e += 1
                    if am and e in (15, 30): I(am.pop(0))
                elif c == 'p':
                    if kt > 0: I(self.smf(kt - 1, 3))
                elif c == 's': I(self.smf(kt, sm)); sm += 1
                elif c == 'm':
                    if qk: I(qk.pop(0))
                elif c == 'w': em.wait_all(vm=False)
                elif c == 'x':
                    seen += 1
                    if xq: I(xq.pop(0))
                    else:
                        left = nx - seen + 1
                        k = -(-len(ex) // left)
                        for _ in range(k):
                            x = ex.pop(0); x() if callable(x) else I(x)
                        if k == 0:
                            if not self.drain_dq(2): self.fill(2)
            assert not xq and not ex and not am and not qk
            if kt % 16 == 15: self.stamp()
        self.flush()
        I(self.smf(63, 3))
    def tail(self):
        I, L, em = self.I, self.L, self.em
        vl = 22
        L(f"""
        v_cmp_gt_u32 vcc, 32, v{vLane}
        v_cndmask_b32 v{vl}, v{vO+8}, v{vO+10}, vcc
        v_cndmask_b32 v{vl+1}, v{vO+24}, v{vO+26}, vcc
        s_mov_b32 s{s_t1}, {hex(f2u(2.0**-40))}
        s_mov_b32 s{s_t2}, {hex(f2u(2.0**60))}
        v_cmp_nle_f32 vcc, s{s_t1}, v{vl}
        v_cmp_nle_f32 s[{s_mask}:{s_mask+1}], s{s_t1}, v{vl+1}
        s_or_b64 s[{s_mask}:{s_mask+1}], s[{s_mask}:{s_mask+1}], vcc
        v_cmp_nge_f32 vcc, s{s_t2}, v{vl}
        v_cmp_nge_f32 s[{s_mask2}:{s_mask2+1}], s{s_t2}, v{vl+1}
        s_or_b64 s[{s_mask}:{s_mask+1}], s[{s_mask}:{s_mask+1}], vcc
        s_or_b64 s[{s_mask}:{s_mask+1}], s[{s_mask}:{s_mask+1}], s[{s_mask2}:{s_mask2+1}]
        """)
        if self.force_slow: I(f"s_cmp_eq_u32 s{s_t1}, s{s_t1}")
        I("s_cbranch_scc1 L_slow")
        em.label("L_slow_back")
        self.ool.append(self.slow_path)
        for t in range(2):
            O = vO + 16 * t
            L(f"""
            v_mul_f32 v{vl+t}, v{vl+t}, v{vR32+t}
            v_mul_f32 v{vl+t}, v{vl+t}, v{vR32+t}
            v_rcp_f32 v{vl+t}, v{vl+t}
            """)
        for t in range(2):
            O = vO + 16 * t
            for k in range(10): I(f"v_mul_f32 v{O+k}, v{O+k}, v{vl+t}")
            for k in range(5): I(f"v_cvt_pk_bf16_f32 v{O+k}, v{O+2*k}, v{O+2*k+1}")
            I(f"s_add_u32 s{s_t0}, s{s_ob}, {t*36864}")
            I(f"buffer_store_dwordx4 {vr(O)}, v18, {srd(sWS)}, s{s_t0} offen sc1")
            I(f"buffer_store_dword v{O+4}, v19, {srd(sWS)}, s{s_t0} offen sc1")
        self.stamp()
        if self.stage < 5: return
        vB = vS
        I(f"s_add_u32 s{s_t1}, s{s_k1}, 4096")
        def load():
            for c in range(8):
                I(f"buffer_load_dwordx4 {vr(vB+4*c)}, v{vDX}, {srd(sWS)}, s{s_k1 if c < 4 else s_t1} offen offset:{1024*(c%4)} sc1")
            I(f"buffer_load_dwordx4 {vr(vB+32)}, v{vDX}, {srd(sWS)}, s{s_k2} offen sc1")
        def check():
            I(f"v_max3_u32 v24, v{vB}, v{vB+1}, v{vB+2}")
            I(f"v_max3_u32 v25, v{vB+3}, v{vB+4}, v{vB+5}")
            for k in range(6, 36, 4):
                I(f"v_max3_u32 v24, v24, v{vB+k}, v{vB+k+1}")
                if k + 2 < 36: I(f"v_max3_u32 v25, v25, v{vB+k+2}, v{vB+k+3}")
            I("v_max_u32 v24, v24, v25")
            I("v_cmp_eq_u32 vcc, -1, v24")
            I("s_cmp_eq_u64 vcc, 0")
        load()
        self.spin("O", load, check)
        self.stamp()
        for c in range(9):
            for P in range(5):
                acc = vr(vF + 16 * P, 16)
                I(f"v_mfma_f32_32x32x16_bf16 {acc}, {ar(20*c+4*P)}, {vr(vB+4*c)}, {acc}")
        I("s_barrier")
        for P in range(5):
            for j in range(4):
                I(f"ds_write_b128 v20, {vr(vF+16*P+4*j)} offset:{128*P + 32*j}")
        em.wait_all(vm=False)
        I("s_barrier")
        self.stamp()
        for rr in range(3):
            vx = vX + 8 * rr; b = vS + 32 * (rr % 2)
            for w in range(4):
                I(f"ds_read_b128 {vr(b+8*w)}, v{vx+6} offset:{w*32*RED_RS}")
                I(f"ds_read_b128 {vr(b+8*w+4)}, v{vx+6} offset:{w*32*RED_RS+16}")
            if rr == 0: continue_ = True
            I(f"v_mul_f32 v{vx+4}, v{vx+4}, v{vx+4}")
            for k in range(4):
                I(f"v_lshlrev_b32 v{24+2*k}, 16, v{vx+k}")
                I(f"v_and_b32 v{25+2*k}, 0xffff0000, v{vx+k}")
            for k in range(0, 8, 2):
                I(f"v_pk_add_f32 {vr(b+k,2)}, {vr(b+k,2)}, {vr(b+8+k,2)}")
                I(f"v_pk_add_f32 {vr(b+16+k,2)}, {vr(b+16+k,2)}, {vr(b+24+k,2)}")
            for k in range(0, 8, 2):
                I(f"v_pk_add_f32 {vr(b+k,2)}, {vr(b+k,2)}, {vr(b+16+k,2)}")
            for k in range(8): I(f"v_fmac_f32 v{24+k}, v{b+k}, v{vx+4}")
            for k in range(4): I(f"v_cvt_pk_bf16_f32 v{vx+k}, v{24+2*k}, v{25+2*k}")
            I(f"buffer_store_dwordx4 {vr(vx)}, v{vx+5}, {srd(sOUT)}, 0 offen")
        self.stamp()
    force_slow = False
    def slow_path(self):
        I, L, em = self.I, self.L, self.em
        em.label("L_slow"); em.fence()
        vm = 24
        def tile_addr():
            L(f"""
            s_lshr_b32 s{s_t0}, s{s_cnt}, 3
            s_mul_i32 s{s_t0}, s{s_t0}, {SLOT}
            s_add_u32 s{s_t0}, s{s_t0}, {WS_KV}
            s_and_b32 s{s_t1}, s{s_cnt}, 7
            s_lshl_b32 s{s_t2}, s{s_t1}, 10
            s_add_u32 s{s_t2}, s{s_t2}, s{s_t0}
            buffer_load_dwordx4 {ar(self.aK1)}, v{vK1}, {srd(sWS)}, s{s_t2} offen sc1
            s_lshr_b32 s{s_t2}, s{s_t1}, 1
            s_lshl_b32 s{s_t2}, s{s_t2}, 9
            s_and_b32 s{s_t3}, s{s_t1}, 1
            s_lshl_b32 s{s_t3}, s{s_t3}, 3
            s_add_u32 s{s_t2}, s{s_t2}, s{s_t3}
            s_add_u32 s{s_t2}, s{s_t2}, s{s_t0}
            buffer_load_dwordx2 {ar(self.aK2,2)}, v{vK2}, {srd(sWS)}, s{s_t2} offen sc1
            s_mul_i32 s{s_t2}, s{s_t1}, 1280
            s_add_u32 s{s_t2}, s{s_t2}, s{s_t0}
            """)
        I(f"v_mov_b32 v{vm}, 0xff800000"); I(f"v_mov_b32 v{vm+1}, 0xff800000")
        I(f"s_mov_b32 s{s_cnt}, 0")
        em.label("L_slow1"); em.fence()
        tile_addr()
        for x in self.qk(0): I(x)
        for t in range(2):
            for k in range(0, 16, 2): I(f"v_max3_f32 v{vm+t}, v{vm+t}, v{vS+16*t+k}, v{vS+16*t+k+1}")
        L(f"""
        s_add_u32 s{s_cnt}, s{s_cnt}, 1
        s_cmp_lt_u32 s{s_cnt}, 64
        s_cbranch_scc1 L_slow1
        """)
        em.fence()
        for t in range(2):
            L(f"""
            v_mov_b32 v26, v{vm+t}
            v_permlane32_swap_b32 v{vm+t}, v26
            v_max_f32 v{vm+t}, v{vm+t}, v26
            """)
        for k in range(32): I(f"v_mov_b32 v{vO+k}, 0")
        I(f"s_mov_b32 s{s_cnt}, 0")
        em.label("L_slow2"); em.fence()
        tile_addr()
        I(f"buffer_load_dwordx4 {ar(self.aV)}, v{vVv}, {srd(sWS)}, s{s_t2} offen sc1")
        I(f"buffer_load_dwordx4 {ar(self.aV+4)}, v{vVv}, {srd(sWS)}, s{s_t2} offen offset:640 sc1")
        for x in self.qk(0): I(x)
        for k in range(32): I(f"v_sub_f32 v{vS+k}, v{vS+k}, v{vm+k//16}")
        for k in range(32): I(f"v_exp_f32 v{vS+k}, v{vS+k}")
        for q in range(4): I(self.smf(0, q))
        L(f"""
        s_add_u32 s{s_cnt}, s{s_cnt}, 1
        s_cmp_lt_u32 s{s_cnt}, 64
        s_cbranch_scc1 L_slow2
        """)
        em.fence()
        L(f"""
        v_cmp_gt_u32 vcc, 32, v{vLane}
        v_cndmask_b32 v22, v{vO+8}, v{vO+10}, vcc
        v_cndmask_b32 v23, v{vO+24}, v{vO+26}, vcc
        """)
        em.fence()
        I("s_branch L_slow_back")

    def dump_regs(self, kind, first, n):
        I = self.I
        self.flush(); self.drain_dq(999); self.em.fence()
        self.L(f"""
        s_lshl_b32 s{s_t0}, s2, 2
        s_add_u32 s{s_t0}, s{s_t0}, s{s_wv}
        s_mul_i32 s{s_t0}, s{s_t0}, {n*256}
        s_add_u32 s{s_t0}, s{s_t0}, {WS_DUMP}
        v_lshlrev_b32 v0, 2, v{vLane}
        """)
        for k in range(n):
            I(f"buffer_store_dword {kind}{first+k}, v0, {srd(sWS)}, s{s_t0} offen")
            I(f"s_add_u32 s{s_t0}, s{s_t0}, 256")
    def build(self):
        em = self.em
        self.prologue(); em.mark("prologue")
        if self.stage >= 1:
            self.gemm1(); em.mark("gemm1")
        if self.stage == 1: self.dump_regs('v', vG, 144)
        if self.stage >= 2:
            self.gemm2(); em.mark("gemm2")
        if self.stage == 2: self.dump_regs('v', 36, 10)
        if self.stage >= 3:
            self.attention(); em.mark("attn")
        if self.stage == 3: self.dump_regs('v', vO, 144)
        if self.stage >= 4:
            self.tail(); em.mark("tail")
        if self.stamps:
            self.L(f"""
            s_lshl_b32 s{s_t0}, s2, 2
            s_add_u32 s{s_t0}, s{s_t0}, s{s_wv}
            s_lshl_b32 s{s_t0}, s{s_t0}, 8
            s_add_u32 s{s_t0}, s{s_t0}, {WS_DUMP + 0x4000000}
            v_lshlrev_b32 v0, 2, v{vLane}
            buffer_store_dword v47, v0, {srd(sWS)}, s{s_t0} offen
            """)
        em.label("L_end")
        em.raw("  s_endpgm")
        for f in list(self.ool): f()
        return em.text()

HEADER = """; Fused LayerNorm + multi-query attention + bilinear GLU FFN, one persistent launch (256 workgroups, one per CU).
; @launch grid=(256,1,1) block=(256,1,1) lds=%d
.amdgcn_target "amdgcn-amd-amdhsa--gfx950"
.text
.globl %s
.p2align 8
.type %s,@function
%s:
"""
FOOTER = """
.section .rodata,"a"
.p2align 6
.amdhsa_kernel %s
  .amdhsa_next_free_vgpr 512
  .amdhsa_next_free_sgpr 102
  .amdhsa_accum_offset 256
  .amdhsa_group_segment_fixed_size 0
  .amdhsa_kernarg_size 96
  .amdhsa_user_sgpr_count 2
  .amdhsa_user_sgpr_kernarg_segment_ptr 1
  .amdhsa_system_sgpr_workgroup_id_x 1
  .amdhsa_float_denorm_mode_32 3
.end_amdhsa_kernel
"""
def generate(stage=99, stamps=False, force_slow=False, verbose=False):
    g = Gen(stage, stamps); g.force_slow = force_slow
    g.hw = {}; g.wo_id = {}; g.dq = []
    body = g.build()
    if verbose:
        prev = (None, 0, 0, 0, 0)
        for m in g.em.marks:
            print(f"{m[0]:10s} model cycles {m[1]-prev[1]:7d} instrs {m[2]-prev[2]:6d} nops {m[3]-prev[3]:5d} waits {m[4]-prev[4]:5d}", file=sys.stderr)
            prev = m
    return HEADER % (LDS_BYTES, KNAME, KNAME, KNAME) + body + FOOTER % KNAME

if __name__ == "__main__":
    ap = argparse.ArgumentParser()
    ap.add_argument("-o", default="parallel_sum__grouped_kv_mqa__glu_gated_bilinear__prompt.s")
    ap.add_argument("--stage", type=int, default=99)
    ap.add_argument("--stamps", action="store_true")
    ap.add_argument("--slow", action="store_true")
    a = ap.parse_args()
    open(a.o, "w").write(generate(a.stage, a.stamps, a.slow, True))
```
